```python
import torch

def _softmax(x, axis=-1):
    return torch.softmax(x, dim=axis)
def _gelu(x):
    return torch.nn.functional.gelu(x, approximate="tanh")
def _silu(x):
    return torch.nn.functional.silu(x)
def _sigmoid(x):
    return torch.sigmoid(x)
def _layernorm(x, axis=-1, eps=1e-5):
    m = x.mean(dim=axis, keepdim=True)
    v = x.var(dim=axis, keepdim=True, unbiased=False)
    return (x - m) / torch.sqrt(v + eps)
def _scatter_add(tgt, idx, src, axis=0):
    return tgt.clone().index_add_(axis, idx, src)
def _segment_sum(src, seg, n):
    out = torch.zeros((n,) + src.shape[1:], dtype=src.dtype)
    return out.index_add_(0, seg, src)
def _pad(x, pw):
    flat = tuple(v for pair in reversed(pw) for v in pair)
    return torch.nn.functional.pad(x, flat)

kernel_name = 'standalone__gqa_block_cached__near_ridge'

def setup_inputs():

    _w = (lambda a: (lambda t: t.to(torch.bfloat16) if t.is_floating_point() else t)(torch.as_tensor(a)))
    B, Sq, D = 8, 128, 448
    Hq, Hkv, Sk, Dh = 16, 8, 512, 256
    assert Hq % Hkv == 0, (Hq, Hkv)
    return {
        "x": _w((lambda *s: torch.randn(*s, dtype=torch.bfloat16) * 0.8)(B, Sq, D)),
        "k_cache": _w((lambda *s: torch.randn(*s, dtype=torch.bfloat16) * 0.8)(B, Hkv, Sk, Dh)),
        "v_cache": _w((lambda *s: torch.randn(*s, dtype=torch.bfloat16) * 0.05)(B, Hkv, Sk, Dh)),
        "wq": _w((lambda *s: torch.randn(*s, dtype=torch.bfloat16) * 0.8)(D, Hq * Dh) * (D ** -0.5)),
        "wo": _w((lambda *s: torch.randn(*s, dtype=torch.bfloat16) * 0.05)(Hq * Dh, D) * ((Hq * Dh) ** -0.5)),
    }

def reference(x, k_cache, v_cache, wq, wo):
    B, Sq, D = x.shape
    Hq, Dh = 16, 256
    Hkv = k_cache.shape[1]
    rep = Hq // Hkv
    q = (lambda x, *d: x.permute(*d))((x @ wq).reshape(B, Sq, Hq, Dh), 0, 2, 1, 3)
    k = (lambda x, n, axis: torch.repeat_interleave(x, n, dim=axis))(k_cache, rep, axis=1)
    v = (lambda x, n, axis: torch.repeat_interleave(x, n, dim=axis))(v_cache, rep, axis=1)
    scores = torch.einsum("bhqd,bhkd->bhqk", q, k) * (Dh ** -0.5)
    p = _softmax(scores, axis=-1)
    o = torch.einsum("bhqk,bhkd->bhqd", p, v)
    return (lambda x, *d: x.permute(*d))(o, 0, 2, 1, 3).reshape(B, Sq, Hq * Dh) @ wo
```

```python
import re

REG_RE = re.compile(r'^(-|abs\()?([vas])(\d+)\)?$')
RNG_RE = re.compile(r'^(-)?([vas])\[(\d+):(\d+)\]$')

def regs_of(op):
    op = op.strip()
    m = REG_RE.match(op)
    if m:
        return [m.group(2) + m.group(3)]
    m = RNG_RE.match(op)
    if m:
        return [m.group(2) + str(i) for i in range(int(m.group(3)), int(m.group(4)) + 1)]
    if op in ('vcc', 'exec', 'm0', 'scc'):
        return [op]
    if op in ('vcc_lo', 'vcc_hi'):
        return ['vcc']
    if op in ('exec_lo', 'exec_hi'):
        return ['exec']
    return []

class Ins:
    __slots__ = ('text', 'mn', 'kind', 'rd', 'wr', 'tag', 'need_vm', 'need_lds', 'note', 'ops')
    def __init__(self, text, tag=None, need_vm=(), need_lds=(), note=None):
        self.text = text
        self.tag = tag
        self.need_vm = tuple(need_vm)
        self.need_lds = tuple(need_lds)
        self.note = note
        t = text.split(';')[0].strip()
        parts = t.split(None, 1)
        self.mn = mn = parts[0] if parts else ''
        rest = parts[1] if len(parts) > 1 else ''
        ops = [o.strip() for o in rest.split(',')] if rest else []
        clean = []
        for o in ops:
            toks = o.split()
            clean.append(toks[0] if toks else '')
        self.ops = clean
        rd, wr = set(), set()
        def R(i):
            if i < len(clean): rd.update(regs_of(clean[i]))
        def W(i):
            if i < len(clean): wr.update(regs_of(clean[i]))
        if mn.endswith(':') or mn.startswith('.') or mn == '':
            self.kind = 'label'
        elif mn.startswith('v_mfma'):
            self.kind = 'mfma'; W(0); R(1); R(2); R(3)
        elif mn.startswith('ds_read'):
            self.kind = 'dsr'; W(0); R(1)
        elif mn.startswith('ds_write'):
            self.kind = 'dsw'
            for i in range(len(clean)): R(i)
        elif mn.startswith('buffer_load') and ' lds' in t:
            self.kind = 'dma'; R(0); R(1); R(2); rd.add('m0')
        elif mn.startswith('buffer_load'):
            self.kind = 'vld'; W(0); R(1); R(2); R(3)
        elif mn.startswith('global_load'):
            self.kind = 'vld'; W(0); R(1); R(2)
        elif mn.startswith('buffer_store') or mn.startswith('global_store'):
            self.kind = 'vst'
            for i in range(len(clean)): R(i)
        elif mn.startswith('buffer_atomic') or mn.startswith('global_atomic'):
            self.kind = 'vst'
            for i in range(len(clean)): R(i)
            if ' sc0' in t:
                self.kind = 'vld'; W(0)
        elif mn in ('buffer_wbl2', 'buffer_inv'):
            self.kind = 'vst'
        elif mn == 's_waitcnt':
            self.kind = 'wait'
        elif mn == 's_barrier':
            self.kind = 'barrier'
        elif mn == 's_nop':
            self.kind = 'nop'
        elif mn.startswith('s_load') or mn.startswith('s_memtime') or mn.startswith('s_memrealtime'):
            self.kind = 'smem'; W(0); R(1)
        elif mn.startswith('s_cbranch') or mn in ('s_branch', 's_endpgm', 's_setprio', 's_sleep'):
            self.kind = 'salu'
            if 'scc' in mn: rd.add('scc')
            if 'vcc' in mn: rd.add('vcc')
            if 'exec' in mn: rd.add('exec')
        elif mn.startswith('s_cmp'):
            self.kind = 'salu'; R(0); R(1); wr.add('scc')
        elif mn.startswith('s_'):
            self.kind = 'salu'; W(0)
            for i in range(1, len(clean)): R(i)
            if mn.startswith(('s_add', 's_sub', 's_and', 's_or', 's_xor', 's_lsh', 's_ashr', 's_bfe', 's_min', 's_max')): wr.add('scc')
            if mn.startswith(('s_addc', 's_subb', 's_cselect')): rd.add('scc')
            if 'saveexec' in mn: wr.add('exec'); rd.add('exec')
        elif mn.startswith('v_cmp'):
            self.kind = 'valu'; W(0); R(1); R(2)
        elif mn.startswith('v_permlane32_swap') or mn.startswith('v_permlane16_swap'):
            self.kind = 'perm'; W(0); W(1); R(0); R(1)
        elif mn.startswith(('v_readfirstlane', 'v_readlane')):
            self.kind = 'rdlane'; W(0); R(1); R(2)
        elif mn.startswith('v_'):
            base = mn.replace('_e32', '').replace('_e64', '')
            self.kind = 'trans' if base in ('v_exp_f32', 'v_rcp_f32', 'v_log_f32', 'v_rsq_f32', 'v_sqrt_f32', 'v_rcp_iflag_f32') else 'valu'
            W(0)
            start = 1
            if base in ('v_add_co_u32', 'v_addc_co_u32', 'v_sub_co_u32'):
                W(1); start = 2
            for i in range(start, len(clean)): R(i)
            if base in ('v_fmac_f32', 'v_pk_fmac_f16'): R(0)
            if base == 'v_cndmask_b32' and len(clean) == 3: rd.add('vcc')
            rd.add('exec')
        else:
            raise ValueError('unknown mnemonic: ' + text)
        self.rd, self.wr = rd, wr

def is_valu(i):
    return i.kind in ('valu', 'trans', 'perm', 'rdlane')

class Prog:
    def __init__(self):
        self.ins = []
    def e(self, text, **kw):
        i = Ins(text, **kw)
        self.ins.append(i)
        return i
    def add(self, i):
        self.ins.append(i)
    def extend(self, lst):
        self.ins.extend(lst)

    def insert_waits(self):
        out = []
        lg = []
        vm = []
        def drain(lst, idx):
            del lst[:idx + 1]
        for i in self.ins:
            if i.kind == 'wait':
                m = re.search(r'vmcnt\((\d+)\)', i.text)
                if m:
                    n = int(m.group(1)); del vm[:max(0, len(vm) - n)]
                m = re.search(r'lgkmcnt\((\d+)\)', i.text)
                if m:
                    n = int(m.group(1)); del lg[:max(0, len(lg) - n)]
                out.append(i); continue
            if i.kind == 'label':
                out.append(i); continue
            touch = i.rd | i.wr
            li = -1
            for k, p in enumerate(lg):
                if p.kind == 'dsr' and (p.wr & touch): li = k
                if p.tag is not None and p.tag in i.need_lds: li = k
            if 'ALL' in i.need_lds and lg: li = len(lg) - 1
            vi = -1
            for k, p in enumerate(vm):
                if p.kind == 'vld' and (p.wr & touch): vi = k
                if p.tag is not None and p.tag in i.need_vm: vi = k
            if 'ALL' in i.need_vm and vm: vi = len(vm) - 1
            w = []
            if vi >= 0:
                n = min(len(vm) - 1 - vi, 63); w.append(f'vmcnt({n})'); del vm[:len(vm) - n]
            if li >= 0:
                n = min(len(lg) - 1 - li, 15); w.append(f'lgkmcnt({n})'); del lg[:len(lg) - n]
            if w:
                out.append(Ins('s_waitcnt ' + ' '.join(w)))
            out.append(i)
            if i.kind in ('dsr', 'dsw'): lg.append(i)
            if i.kind in ('dma', 'vld', 'vst'): vm.append(i)
            assert len(vm) <= 63, ('too many outstanding vmem ops', i.text)
        self.ins = out

    def pad_hazards(self):
        out = []
        def states(i):
            if i.kind == 'label': return 0
            if i.kind == 'nop':
                return int(i.ops[0]) + 1
            return 1
        nins = 0
        for i in self.ins:
            if i.kind in ('label',):
                out.append(i); continue
            need = 0
            dist = 0
            for p in reversed(out):
                if dist >= 20: break
                req = 0
                if p.kind != 'label':
                    req = hazard(p, i)
                if req > dist: need = max(need, req - dist)
                dist += states(p)
            while need > 0:
                k = min(need, 16)
                out.append(Ins(f's_nop {k-1}', note='hazard')); nins += k
                need -= k
            out.append(i)
        self.ins = out
        return nins

    def text(self):
        l = []
        for i in self.ins:
            if i.kind == 'label' and i.mn.endswith(':'):
                l.append(i.text)
            else:
                l.append('    ' + i.text)
        return '\n'.join(l) + '\n'

def vregs(s):
    return {r for r in s if r[0] in 'va' and r[1:].isdigit()}
def sregs(s):
    return {r for r in s if (r[0] == 's' and r[1:].isdigit()) or r == 'vcc'}

def mfma_passes(i):
    return 8 if '32x32' in i.mn else 4

def hazard(p, c):
    r = 0
    if p.kind == 'mfma':
        ps = mfma_passes(p)
        d = p.wr
        if c.kind == 'mfma':
            cops = [set(regs_of(o)) for o in c.ops]
            srcc = cops[3] if len(cops) > 3 else set()
            if (cops[1] | cops[2]) & d: r = max(r, 12 if ps == 8 else 8)
            if srcc & d:
                if not (srcc == d and mfma_passes(c) == ps): r = max(r, 10 if ps == 8 else 6)
            elif cops[0] & d:
                r = max(r, 12 if ps == 8 else 8)
        else:
            if (c.rd | c.wr) & d: r = max(r, 12 if ps == 8 else 8)
            if is_valu(c) or c.kind in ('dsr', 'vld'):
                pc = set(regs_of(p.ops[3])) if len(p.ops) > 3 else set()
                if c.wr & pc: r = max(r, 7 if ps == 8 else 3)
    if is_valu(p):
        pw = vregs(p.wr)
        if c.kind == 'mfma' and (pw & c.rd): r = max(r, 2)
        if c.kind == 'perm' and (pw & c.rd): r = max(r, 2)
        if c.kind == 'rdlane' and (pw & c.rd): r = max(r, 1)
        if p.kind == 'trans' and is_valu(c) and (pw & c.rd): r = max(r, 1)
        ps_ = sregs(p.wr)
        if ps_:
            if c.kind in ('dma', 'vld', 'vst') and (ps_ & c.rd): r = max(r, 5)
            if is_valu(c) and (ps_ & c.rd): r = max(r, 2)
            if c.kind == 'salu' and (ps_ & c.rd): r = max(r, 4)
        if 'exec' in p.wr and (c.kind == 'mfma' or is_valu(c)): r = max(r, 4)
    if p.kind == 'salu' and 'm0' in p.wr and c.kind == 'dma': r = max(r, 1)
    if p.kind == 'salu' and 'exec' in p.wr and c.kind == 'mfma': r = max(r, 4)
    if p.kind == 'vst' and 'x4' in p.mn and is_valu(c):
        if vregs(p.rd) & c.wr: r = max(r, 2)
    return r
```

```python
import sys, math
from asmlib import *

NAME = 'standalone__gqa_block_cached__near_ridge'
OPT = dict(nt_kv=0, nt_w=0)
for a in sys.argv[2:]:
    k, v = a.split('='); OPT[k] = int(v)

XPITCH = 912
RING0 = 65536
RINGSZ = 24576
NPOS = 24
STAT = 61440
PBUF = lambda c: (c % 3) * 16384
OX = 16384
sX, sWQ, sK, sV, sWO, sP = 20, 24, 28, 32, 36, 40
sW, sRING, sSO, sT0, sT1, sC = 44, 45, 46, 47, 48, 49
sXL, sXG = 50, 51
sOB = 52
def srd(n): return f's[{n}:{n+3}]'
vLANE = 1; vLIN = 2
vW = [3, 4, 5, 6]; vK = [7, 8, 9, 10]; vV = [11, 12, 13, 14]; vO = [15, 16, 17, 18, 19, 20, 21]
vXA = 22; vWA = [23, 24]; vKA = [25, 26, 27, 28, 29, 30, 31, 32]; vVA = [33, 34]
vXW = 35
vOA = [[36, 37], [38, 39]]
vOR = 40
vST = 41
vSR = 42
vX1 = 43
vT = list(range(44, 64))
vOACC = 64
vS = 128
def V(n, k=1): return f'v{n}' if k == 1 else f'v[{n}:{n+k-1}]'
def A(n, k=1): return f'a{n}' if k == 1 else f'a[{n}:{n+k-1}]'

P = Prog()
e = P.e

def ntkv(): return ' nt' if OPT['nt_kv'] else ''
def ntw(): return ' nt' if OPT['nt_w'] else ''

def slot_group_setup(n):
    pos = n % NPOS
    if n < 56:
        so = (n // 4) * 262144
    elif n < 120:
        m = n - 56; h = m // 8; c, dh = h // 2, h % 2
        so = c * 65536 + dh * 256 + ((m % 8) // 4) * 8192
    else:
        m = n - 120
        so = (m // 4) * 16384
    return [Ins(f's_add_u32 m0, s{sRING}, {pos*1024}'), Ins(f's_mov_b32 s{sSO}, {so}')]

def slot_dma(n, need_lds=()):
    j = n % 4
    if n < 56: v, r, nt = vW[j], sWQ, ntw()
    elif n < 120: v, r, nt = vK[j], sK, ntkv()
    else: v, r, nt = vV[j], sV, ntkv()
    off = f' offset:{j*1024}' if j else ''
    return Ins(f'buffer_load_dwordx4 {V(v)}, {srd(r)}, s{sSO} offen{off}{nt} lds', tag=f'S{n}', need_lds=need_lds)

def consumed_tags(n):
    o = n - NPOS
    if o < 0: return ()
    if o < 56: return (f'rw{o//2}',)
    if o < 120: return (f'rk{(o-56)//8}',)
    return (f'rv{(o-120)//2}',)

def issue_slots(ns):
    out = []
    for n in ns:
        su = slot_group_setup(n - n % 4)
        if n % 4 == 0: out += su
        d = slot_dma(n, consumed_tags(n)); d.note = (su[0].text, su[1].text)
        out.append(d)
    return out

WOBUF = {0: ('ring', 16), 1: ('ring', 0), 2: ('ring', 7), 3: ('ring', 16), 4: ('ring', 0), 5: ('ring', 7), 6: ('ring', 16), 7: ('ring', 0)}
def wo_issue(j, need_lds=()):
    kind, pos = WOBUF[j]
    out = []
    for half in range(2):
        su = (f's_add_u32 m0, s{sRING}, {pos*1024 + half*4096}', f's_mov_b32 s{sSO}, {j*28672 + half*4096}')
        out.append(Ins(su[0])); out.append(Ins(su[1]))
        for t in range(4*half, min(7, 4*half+4)):
            off = f' offset:{(t%4)*1024}' if t % 4 else ''
            out.append(Ins(f'buffer_load_dwordx4 {V(vO[t])}, {srd(sWO)}, s{sSO} offen{off}{ntw()} lds', tag=f'WO{j}', need_lds=need_lds, note=su))
    return out

def interleave(mfmas, fillers_by_slot):
    out = []
    for i, m in enumerate(mfmas):
        out.append(m)
        out.extend(fillers_by_slot.get(i, []))
    return out

def spread(dst, items, first, last):
    n = last - first + 1
    for k, it in enumerate(items):
        s = first + (k * n) // len(items)
        dst.setdefault(s, []).append(it)

e(f's_cmp_ge_u32 s2, 256')
e(f's_cbranch_scc1 L_end')
e(f's_load_dwordx16 s[4:19], s[0:1], 0')
e(f'v_and_b32 {V(vLANE)}, 63, v0')
e(f'v_lshrrev_b32 {V(vT[0])}, 6, v0')
e(f'v_lshlrev_b32 {V(vLIN)}, 4, {V(vLANE)}')
e(f'v_readfirstlane_b32 s{sW}, {V(vT[0])}')
e('s_and_b32 s53, s2, 7')
e('s_lshr_b32 s54, s2, 3')
e('s_lshr_b32 s55, s54, 2')
e('s_and_b32 s56, s54, 1')
e('s_bfe_u32 s57, s54, 0x10001')
e('s_lshl_b32 s58, s53, 1')
e('s_add_u32 s58, s58, s56')
e(f's_mul_i32 s{sRING}, s{sW}, {RINGSZ}')
e(f's_add_u32 s{sRING}, s{sRING}, {RING0}')
e(f's_mul_i32 s{sXL}, s{sW}, {16*XPITCH}')
e(f's_mul_i32 s{sXG}, s{sW}, {16*896}')
e('s_waitcnt lgkmcnt(0)')
def mk_srd(r, plo, off_sreg, nrec):
    e(f's_add_u32 s{r}, s{plo}, s{off_sreg}')
    e(f's_addc_u32 s{r+1}, s{plo+1}, 0')
    e(f's_and_b32 s{r+1}, s{r+1}, 0xffff')
    e(f's_mov_b32 s{r+2}, {nrec}')
    e(f's_mov_b32 s{r+3}, 0x20000')
e('s_lshl_b32 s59, s55, 1')
e('s_add_u32 s59, s59, s57')
e(f's_mul_i32 s59, s59, {64*896}')
mk_srd(sX, 4, 59, 64*896)
e('s_mov_b32 exec_hi, 0x00ffffff')
for r in range(16):
    e(f's_add_u32 m0, s{sXL}, {r*XPITCH}')
    e(f's_add_u32 s{sSO}, s{sXG}, {r*896}')
    e(f'buffer_load_dwordx4 {V(vLIN)}, {srd(sX)}, s{sSO} offen{ntw()} lds', tag='X')
e('s_mov_b32 exec_hi, -1')
e('s_lshl_b32 s59, s58, 9')
mk_srd(sWQ, 10, 59, 447*8192+512)
t0, t1, t2, t3 = vT[0], vT[1], vT[2], vT[3]
e(f'v_bfe_u32 {V(t0)}, {V(vLANE)}, 4, 1')
e(f'v_lshlrev_b32 {V(t0)}, 2, {V(t0)}')
e(f'v_and_b32 {V(t1)}, 7, {V(vLANE)}')
e(f'v_xor_b32 {V(t0)}, {V(t0)}, {V(t1)}')
e(f'v_lshlrev_b32 {V(t0)}, 4, {V(t0)}')
e(f's_lshl_b32 s{sT0}, s{sW}, 7')
e(f'v_add_u32 {V(t0)}, s{sT0}, {V(t0)}')
e(f'v_lshrrev_b32 {V(t1)}, 3, {V(vLANE)}')
e(f'v_lshl_add_u32 {V(vW[0])}, {V(t1)}, 13, {V(t0)}')
for j in range(1, 4):
    e(f'v_add_u32 {V(vW[j])}, {j*(65536-1024)}, {V(vW[0])}')
P.extend(issue_slots(range(0, 24)))
e(f'v_lshl_add_u32 {V(vV[0])}, {V(t1)}, 9, {V(t0)}')
for j in range(1, 4):
    e(f'v_add_u32 {V(vV[j])}, {j*(4096-1024)}, {V(vV[0])}')
e('s_lshl_b32 s59, s55, 3')
e('s_add_u32 s59, s59, s53')
e('s_lshl_b32 s59, s59, 18')
mk_srd(sK, 6, 59, 262144)
mk_srd(sV, 8, 59, 262144)
e('s_mul_i32 s59, s58, 229376')
mk_srd(sWO, 12, 59, 229376)
e('s_mul_i32 s59, s2, 57344')
mk_srd(sP, 18, 59, 57344)
e(f's_mov_b32 s{sC}, 0x3db8aa3b')
e(f'v_lshrrev_b32 {V(t1)}, 4, {V(vLANE)}')
e(f'v_and_b32 {V(t2)}, 15, {V(vLANE)}')
e(f'v_xor_b32 {V(t2)}, {V(t2)}, {V(t1)}')
e(f's_lshl_b32 s{sT0}, s{sW}, 14')
e(f'v_lshlrev_b32 {V(t1)}, 9, {V(t1)}')
e(f'v_add_u32 {V(t1)}, s{sT0}, {V(t1)}')
for j in range(4):
    e(f'v_xor_b32 {V(t3)}, {4*j}, {V(t2)}')
    e(f'v_lshl_add_u32 {V(vK[j])}, {V(t3)}, 4, {V(t1)}')
    if j: e(f'v_add_u32 {V(vK[j])}, {j*1024}, {V(vK[j])}')
hf, r4, g1, c4, sw = vT[4], vT[5], vT[6], vT[7], vT[8]
e(f'v_lshrrev_b32 {V(hf)}, 5, {V(vLANE)}')
e(f'v_bfe_u32 {V(r4)}, {V(vLANE)}, 2, 2')
e(f'v_bfe_u32 {V(g1)}, {V(vLANE)}, 4, 1')
e(f'v_and_b32 {V(c4)}, 3, {V(vLANE)}')
e(f'v_lshrrev_b32 {V(t0)}, 1, {V(c4)}')
e(f'v_and_b32 {V(t1)}, 1, {V(c4)}')
e(f'v_lshl_or_b32 {V(sw)}, {V(t1)}, 1, {V(t0)}')
e(f'v_and_b32 {V(t0)}, 31, {V(vLANE)}')
e(f'v_mul_u32_u24 {V(vXA)}, {XPITCH}, {V(t0)}')
e(f'v_lshl_add_u32 {V(vXA)}, {V(hf)}, 4, {V(vXA)}')
b64 = vT[9]
e(f'v_lshrrev_b32 {V(b64)}, 1, {V(r4)}')
e(f'v_lshlrev_b32 {V(b64)}, 6, {V(b64)}')
e(f'v_lshlrev_b32 {V(t0)}, 5, {V(g1)}')
e(f'v_lshl_add_u32 {V(t1)}, {V(sw)}, 3, {V(t0)}')
e(f'v_lshl_add_u32 {V(t2)}, {V(c4)}, 3, {V(t0)}')
e(f'v_lshlrev_b32 {V(t3)}, 7, {V(r4)}')
e(f'v_add_u32 {V(t3)}, s{sRING}, {V(t3)}')
for dt in range(2):
    e(f'v_xor_b32 {V(t0)}, {64*dt}, {V(b64)}')
    e(f'v_add3_u32 {V(vWA[dt])}, {V(t0)}, {V(t1)}, {V(t3)}')
    e(f'v_lshl_add_u32 {V(vWA[dt])}, {V(hf)}, 10, {V(vWA[dt])}')
    e(f'v_add3_u32 {V(vVA[dt])}, {V(t0)}, {V(t2)}, {V(t3)}')
    e(f'v_lshl_add_u32 {V(vVA[dt])}, {V(hf)}, 9, {V(vVA[dt])}')
e(f'v_and_b32 {V(t0)}, 15, {V(vLANE)}')
e(f'v_xor_b32 {V(t0)}, {V(t0)}, {V(hf)}')
e(f'v_and_b32 {V(t2)}, 31, {V(vLANE)}')
e(f'v_lshlrev_b32 {V(t2)}, 8, {V(t2)}')
e(f'v_add_u32 {V(t2)}, s{sRING}, {V(t2)}')
for s in range(8):
    e(f'v_xor_b32 {V(t3)}, {2*s}, {V(t0)}')
    e(f'v_lshl_add_u32 {V(vKA[s])}, {V(t3)}, 4, {V(t2)}')
e(f's_lshl_b32 s{sT0}, s{sW}, 12')
e(f'v_add_u32 {V(vXW)}, s{sT0}, {V(vLIN)}')
e(f's_lshr_b32 s{sT0}, s{sW}, 1')
e(f's_lshl_b32 s{sT0}, s{sT0}, 14')
e(f'v_add_u32 {V(vOR)}, s{sT0}, {V(vLIN)}')
e(f'v_and_b32 {V(t0)}, 31, {V(vLANE)}')
e(f'v_lshlrev_b32 {V(t0)}, 4, {V(t0)}')
e(f'v_add_u32 {V(vSR)}, {STAT}, {V(t0)}')
e(f's_lshl_b32 s{sT0}, s{sW}, 2')
e(f'v_add_u32 {V(vST)}, s{sT0}, {V(vSR)}')
e(f'v_lshl_add_u32 {V(t0)}, {V(hf)}, 2, {V(r4)}')
e(f'v_mul_u32_u24 {V(t0)}, 896, {V(t0)}')
e(f'v_add_u32 {V(t0)}, {V(t0)}, {V(t1)}')
e(f's_and_b32 s{sT0}, s{sW}, 1')
e(f's_mul_i32 s{sT1}, s{sT0}, 448')
e(f's_add_u32 s{sT1}, s{sT1}, {RING0}')
e(f'v_add_u32 {V(t0)}, s{sT1}, {V(t0)}')
e(f'v_add_u32 {V(t2)}, {V(t0)}, {V(b64)}')
e(f'v_sub_u32 {V(t3)}, {V(t0)}, {V(b64)}')
e(f's_cmp_eq_u32 s{sT0}, 0')
e(f's_cselect_b64 vcc, -1, 0')
e(f'v_cndmask_b32 {V(vOA[0][0])}, {V(t3)}, {V(t2)}, vcc')
e(f'v_cndmask_b32 {V(vOA[0][1])}, {V(t2)}, {V(t3)}, vcc')
e(f'v_add_u32 {V(vOA[1][0])}, {2*RINGSZ}, {V(vOA[0][0])}')
e(f'v_add_u32 {V(vOA[1][1])}, {2*RINGSZ}, {V(vOA[0][1])}')
for t in range(7):
    e(f'v_add_u32 {V(t0)}, {64*t}, {V(vLANE)}')
    e(f'v_mul_u32_u24 {V(t1)}, 1171, {V(t0)}')
    e(f'v_lshrrev_b32 {V(t1)}, 16, {V(t1)}')
    e(f'v_bfe_u32 {V(t1)}, {V(t1)}, 1, 1')
    e(f'v_lshlrev_b32 {V(t1)}, 6, {V(t1)}')
    e(f'v_xor_b32 {V(vO[t])}, {V(t1)}, {V(vLIN)}')
e(f's_mul_i32 s{sT0}, s{sW}, 7168')
for t in range(7):
    e(f'v_add_u32 {V(vO[t])}, s{sT0}, {V(vO[t])}')

F1 = 128
def p1_reads(s):
    b = F1 + 16*(s % 3)
    pos = (2*s) % NPOS
    out = []
    for qt in range(2):
        out.append(Ins(f'ds_read_b128 {A(b+8+4*qt, 4)}, {V(vXA)} offset:{qt*32*XPITCH + s*32}', tag='rx'))
    for dt in range(2):
        for rd in range(2):
            out.append(Ins(f'ds_read_b64_tr_b16 {A(b+4*dt+2*rd, 2)}, {V(vWA[dt])} offset:{pos*1024 + rd*512}',
                           tag=f'rw{s}', need_vm=(f'S{2*s}', f'S{2*s+1}')))
    return out
e('s_barrier', need_vm=('X',))
P.extend(p1_reads(0)); P.extend(p1_reads(1))
mf = []; fl = {}
for s in range(28):
    b = F1 + 16*(s % 3)
    for dt in range(2):
        for qt in range(2):
            d = vS + 32*dt + 16*qt
            c = '0' if s == 0 else V(d, 16)
            mf.append(Ins(f'v_mfma_f32_32x32x16_bf16 {V(d,16)}, {A(b+4*dt,4)}, {A(b+8+4*qt,4)}, {c}'))
    if s + 2 < 28:
        spread(fl, p1_reads(s+2), 4*s, 4*s+2)
    G = 6 + (s - 2)//2
    if s >= 2 and G <= 18:
        ns = [4*G, 4*G+1] if s % 2 == 0 else [4*G+2, 4*G+3]
        spread(fl, issue_slots(ns), 4*s+2, 4*s+3)
P.extend(interleave(mf, fl))
e('s_barrier', need_lds=('rx',))
P.extend(issue_slots(range(76, 80)))
PK = vT[0]
for dt in range(2):
    for qt in range(2):
        d = vS + 32*dt + 16*qt
        base = PK + 8*((dt*2+qt) % 2)
        for j in range(8):
            e(f'v_cvt_pk_bf16_f32 {V(base+j)}, {V(d+2*j)}, {V(d+2*j+1)}')
        for t in range(2):
            e(f'ds_write_b128 {V(vXW)}, {V(base+4*t,4)} offset:{qt*16384 + (2*dt+t)*1024}', tag='wq')
e('s_barrier', need_lds=('wq',))
def q_read(qt, s):
    return Ins(f'ds_read_b128 {A(64*qt+4*s,4)}, {V(vLIN)} offset:{(qt*16+s)*1024}', tag='rq')

F2 = 128
def k_read(ks):
    h, sp = ks // 8, ks % 8
    pos = (56 + 8*h) % NPOS
    return Ins(f'ds_read_b128 {A(F2+4*(ks%4),4)}, {V(vKA[sp])} offset:{pos*1024}', tag=f'rk{h}',
               need_vm=tuple(f'S{56+8*h+j}' for j in range(8)))
vM = [vT[16], vT[17]]
def max_ops(c):
    out = []
    for qt in range(2):
        d = vS + 32*c + 16*qt
        for j in range(8):
            if c == 0 and j == 0:
                out.append(Ins(f'v_max_f32 {V(vM[qt])}, {V(d)}, {V(d+1)}'))
            else:
                out.append(Ins(f'v_max3_f32 {V(vM[qt])}, {V(d+2*j)}, {V(d+2*j+1)}, {V(vM[qt])}'))
    return out
for s in range(4):
    P.add(q_read(0, s)); P.add(q_read(1, s))
for ks in range(3): P.add(k_read(ks))
mf = []; fl = {}
for ks in range(64):
    h, sp = ks // 8, ks % 8
    c, dh = h // 2, h % 2
    s = 8*dh + sp
    for qt in range(2):
        d = vS + 32*c + 16*qt
        cc = '0' if s == 0 else V(d, 16)
        mf.append(Ins(f'v_mfma_f32_32x32x16_bf16 {V(d,16)}, {A(F2+4*(ks%4),4)}, {A(64*qt+4*s,4)}, {cc}'))
    if ks + 3 < 64: fl.setdefault(2*ks, []).append(k_read(ks+3))
    if ks < 12:
        fl.setdefault(2*ks, []).append(q_read(0, ks+4)); fl.setdefault(2*ks+1, []).append(q_read(1, ks+4))
for h in range(1, 8):
    spread(fl, issue_slots(range(80+8*(h-1), 80+8*h)), 16*h+1, 16*h+15)
for c in range(3):
    spread(fl, max_ops(c), 32*(c+1)+6, 32*(c+1)+24)
P.extend(interleave(mf, fl))
P.extend(issue_slots(range(136, 144)))
P.extend(max_ops(3))
tA, tB = vT[18], vT[19]
for qt in range(2):
    e(f'v_mov_b32 {V(tA)}, {V(vM[qt])}')
    e(f'v_permlane32_swap_b32 {V(tA)}, {V(vM[qt])}')
    e(f'v_max_f32 {V(vM[qt])}, {V(tA)}, {V(vM[qt])}')
    e(f'ds_write_b32 {V(vST)}, {V(vM[qt])} offset:{qt*512}', tag='wm')
e('s_barrier', need_lds=('wm',))
for qt in range(2):
    e(f'ds_read_b128 {V(vT[4*qt],4)}, {V(vSR)} offset:{qt*512}')
vMC = vM
for qt in range(2):
    b = vT[4*qt]
    e(f'v_max3_f32 {V(tA)}, {V(b)}, {V(b+1)}, {V(b+2)}')
    e(f'v_max_f32 {V(tA)}, {V(tA)}, {V(b+3)}')
    e(f'v_mul_f32 {V(vMC[qt])}, s{sC}, {V(tA)}')
vL = [vT[18], vT[19]]
PKB = vT[0]
def exp_ops(c):
    out = []
    for qt in range(2):
        d = vS + 32*c + 16*qt
        base = PKB + 8*qt
        for j in range(16):
            out.append(Ins(f'v_fma_f32 {V(d+j)}, {V(d+j)}, s{sC}, -{V(vMC[qt])}'))
            out.append(Ins(f'v_exp_f32 {V(d+j)}, {V(d+j)}'))
        for j in range(16):
            if c == 0 and j == 0:
                out.append(Ins(f'v_mov_b32 {V(vL[qt])}, {V(d)}'))
            else:
                out.append(Ins(f'v_add_f32 {V(vL[qt])}, {V(vL[qt])}, {V(d+j)}'))
            if j % 2 == 1:
                out.append(Ins(f'v_cvt_pk_bf16_f32 {V(base+j//2)}, {V(d+j-1)}, {V(d+j)}'))
        for t in range(2):
            out.append(Ins(f'ds_write_b128 {V(vXW)}, {V(base+4*t,4)} offset:{PBUF(c) + (qt*2+t)*1024}', tag=f'wp{c}'))
    return reorder_exp(out)
def reorder_exp(lst):
    res = []
    i = 0
    while i < len(lst):
        if lst[i].mn == 'v_fma_f32' and i + 3 < len(lst) and lst[i+2].mn == 'v_fma_f32':
            res += [lst[i], lst[i+2], lst[i+1], lst[i+3]]; i += 4
        else:
            res.append(lst[i]); i += 1
    return res
def sum_ops():
    out = []
    for qt in range(2):
        tmp = vX1
        out.append(Ins(f'v_mov_b32 {V(tmp)}, {V(vL[qt])}'))
        out.append(Ins(f'v_permlane32_swap_b32 {V(tmp)}, {V(vL[qt])}'))
        out.append(Ins(f'v_add_f32 {V(vL[qt])}, {V(tmp)}, {V(vL[qt])}'))
        out.append(Ins(f'ds_write_b32 {V(vST)}, {V(vL[qt])} offset:{1024 + qt*512}', tag='wl'))
    return out
P.extend(exp_ops(0))

F3 = 0
def v_reads(u):
    b = F3 + 16*(u % 3)
    pos = (120 + 2*u) % NPOS
    out = []
    for dt in range(2):
        for rd in range(2):
            out.append(Ins(f'ds_read_b64_tr_b16 {A(b+4*dt+2*rd,2)}, {V(vVA[dt])} offset:{(pos+rd)*1024}', tag=f'rv{u}',
                           need_vm=(f'S{120+2*u}', f'S{121+2*u}')))
    return out
def p_reads(u):
    b = F3 + 16*(u % 3)
    c, uu = u // 8, u % 8
    wq_, t = uu // 2, uu % 2
    return [Ins(f'ds_read_b128 {A(b+8+4*qt,4)}, {V(vLIN)} offset:{PBUF(c) + wq_*4096 + (qt*2+t)*1024}', tag=f'rp{c}') for qt in range(2)]
P.extend(v_reads(0)); P.extend(v_reads(1))
e('s_barrier', need_lds=('wp0',))
P.extend(p_reads(0)); P.extend(p_reads(1))
mf = []; fl = {}
for u in range(32):
    b = F3 + 16*(u % 3)
    for dt in range(2):
        for qt in range(2):
            d = vOACC + 32*dt + 16*qt
            cc = '0' if u == 0 else V(d, 16)
            mf.append(Ins(f'v_mfma_f32_32x32x16_bf16 {V(d,16)}, {A(b+4*dt,4)}, {A(b+8+4*qt,4)}, {cc}'))
for c in range(4):
    s0 = 32*c
    if c < 3:
        ex = exp_ops(c+1)
        if c == 2: ex = ex + sum_ops()
        spread(fl, ex, s0, s0+22)
        fl.setdefault(s0+23, []).append(Ins('s_barrier', need_lds=(f'wp{c+1}', 'wl', f'rp{c-1}') ))
for u in range(32):
    if u + 2 < 32:
        spread(fl, v_reads(u+2), 4*u, 4*u+1)
        pr = p_reads(u+2)
        if u % 8 == 6:
            fl.setdefault(4*u, []).extend(pr)
        elif u % 8 == 7:
            fl.setdefault(4*u+2, []).extend(pr)
        else:
            fl.setdefault(4*u+2, []).extend(pr)
    n0 = 144 + 2*(u-1)
    if u >= 1 and n0 + 1 < 184:
        spread(fl, issue_slots([n0, n0+1]), 4*u+2, 4*u+3)
spread(fl, wo_issue(0, need_lds=tuple(f'rv{k}' for k in range(20, 24))), 4*24+2, 4*27+3)
spread(fl, wo_issue(1, need_lds=tuple(f'rv{k}' for k in range(24, 28))), 4*28+2, 4*30+3)
fl.setdefault(3*32+8, []).append(Ins('s_barrier', need_lds=('rp2',)))
vRL = [vT[16], vT[17]]
lt = []
for qt in range(2):
    lt.append(Ins(f'ds_read_b128 {V(vT[4*qt],4)}, {V(vSR)} offset:{1024 + qt*512}'))
for qt in range(2):
    b = vT[4*qt]
    lt.append(Ins(f'v_add_f32 {V(b)}, {V(b)}, {V(b+1)}'))
    lt.append(Ins(f'v_add_f32 {V(b+2)}, {V(b+2)}, {V(b+3)}'))
    lt.append(Ins(f'v_add_f32 {V(b)}, {V(b)}, {V(b+2)}'))
    lt.append(Ins(f'v_rcp_f32 {V(vRL[qt])}, {V(b)}'))
spread(fl, lt, 3*32+4, 3*32+20)
P.extend(interleave(mf, fl))
P.extend(wo_issue(2, need_lds=tuple(f'rv{k}' for k in range(27, 32))))
for dt in range(2):
    for qt in range(2):
        d = vOACC + 32*dt + 16*qt
        base = PK + 8*((dt*2+qt) % 2)
        for j in range(16):
            e(f'v_mul_f32 {V(d+j)}, {V(vRL[qt])}, {V(d+j)}')
        for j in range(8):
            e(f'v_cvt_pk_bf16_f32 {V(base+j)}, {V(d+2*j)}, {V(d+2*j+1)}')
        for t in range(2):
            e(f'ds_write_b128 {V(vXW)}, {V(base+4*t,4)} offset:{OX + qt*16384 + (2*dt+t)*1024}', tag='wo')
e('s_barrier', need_lds=('wo',), need_vm=('WO0',))
FO = 128
for ks in range(16):
    e(f'ds_read_b128 {A(FO+4*ks,4)}, {V(vOR)} offset:{OX + ks*1024}', tag='ro')

F4 = 0
NB4 = 10
def wo_read(i):
    ks, nt = i // 7, i % 7
    j, kk = ks // 2, ks % 2
    kind, pos = WOBUF[j]
    b = F4 + 4*(i % NB4)
    out = []
    for rd in range(2):
        piece = 2*kk + rd
        st, rel = piece // 2, (piece % 2)*RINGSZ + pos*1024
        out.append(Ins(f'ds_read_b64_tr_b16 {A(b+2*rd,2)}, {V(vOA[st][nt%2])} offset:{rel + 64*nt}', tag=f'ro{j}'))
    return out
LEAD = 5
for i in range(LEAD): P.extend(wo_read(i))
mf = []; fl = {}
for i in range(112):
    ks, nt = i // 7, i % 7
    d = vS + 16*nt
    cc = '0' if ks == 0 else V(d, 16)
    mf.append(Ins(f'v_mfma_f32_32x32x16_bf16 {V(d,16)}, {A(F4+4*(i%NB4),4)}, {A(FO+4*ks,4)}, {cc}'))
    k = i + LEAD
    if k < 112:
        if k % 14 == 0:
            j = k // 14
            fl.setdefault(i, []).append(Ins('s_barrier', need_vm=(f'WO{j}',), need_lds=(f'ro{j-1}',)))
            if j + 2 < 8:
                pass
        fl.setdefault(i, []).extend(wo_read(k))
        if k % 14 == 0 and k // 14 + 2 < 8 and k // 14 >= 1:
            j = k // 14
            spread(fl, wo_issue(j+2), i+1, i+10)
P.extend(interleave(mf, fl))
e(f's_mul_i32 s{sT0}, s{sW}, 14336')
e(f'v_add_u32 {V(vX1)}, s{sT0}, {V(vLIN)}')
for nt in range(7):
    d = vS + 16*nt
    base = PK + 8*(nt % 2)
    for j in range(8):
        e(f'v_cvt_pk_bf16_f32 {V(base+j)}, {V(d+2*j)}, {V(d+2*j+1)}')
    for u in range(2):
        off = (nt*2+u)*1024
        so, io = off & ~4095, off & 4095
        e(f's_mov_b32 s{sSO}, {so}')
        e(f'buffer_store_dwordx4 {V(base+4*u,4)}, {V(vX1)}, {srd(sP)}, s{sSO} offen offset:{io}')
e('s_waitcnt vmcnt(0)')
P.e('L_end:')
e('s_endpgm')

def check_m0(prog):
    m0 = so = None
    for i in prog.ins:
        if i.kind == 'salu' and 'm0' in i.wr: m0 = i.text
        if i.kind == 'salu' and f's{sSO}' in i.wr: so = i.text
        if i.kind == 'dma' and i.note is not None:
            assert (m0, so) == i.note, (i.text, m0, so, i.note)
check_m0(P)
P.insert_waits()
nn = P.pad_hazards()
main_text = P.text()

R = Prog(); r = R.e
r('s_cmp_ge_u32 s2, 224')
r('s_cbranch_scc1 L_rend')
r('s_load_dwordx2 s[4:5], s[0:1], 40')
r('s_load_dwordx2 s[6:7], s[0:1], 56')
r('v_lshrrev_b32 v2, 6, v0')
r('v_and_b32 v1, 63, v0')
r('v_readfirstlane_b32 s8, v2')
r('s_lshl_b32 s9, s2, 2')
r('s_add_u32 s9, s9, s8')
r('s_mul_i32 s10, s9, 1171')
r('s_lshr_b32 s10, s10, 16')
r('s_mul_i32 s11, s10, 56')
r('s_sub_u32 s11, s9, s11')
r('s_mul_i32 s12, s11, 4682')
r('s_lshr_b32 s12, s12, 16')
r('s_mul_i32 s13, s12, 14')
r('s_sub_u32 s13, s11, s13')
r('s_mul_i32 s14, s10, %d' % (16*57344))
r('s_mul_i32 s15, s11, 1024')
r('s_add_u32 s14, s14, s15')
r('s_waitcnt lgkmcnt(0)')
r('s_add_u32 s20, s6, s14')
r('s_addc_u32 s21, s7, 0')
r('s_and_b32 s21, s21, 0xffff')
r('s_mov_b32 s22, %d' % (15*57344 + 1024))
r('s_mov_b32 s23, 0x20000')
r('s_mov_b32 s24, s4')
r('s_and_b32 s25, s5, 0xffff')
r('s_mov_b32 s26, %d' % (1024*896))
r('s_mov_b32 s27, 0x20000')
r('v_lshlrev_b32 v3, 4, v1')
for h in range(16):
    r(f's_mov_b32 s28, {h*57344}')
    r(f'buffer_load_dwordx4 v[{8+4*h}:{11+4*h}], v3, s[20:23], s28 offen')
r('s_lshl_b32 s15, s10, 6')
r('s_lshr_b32 s16, s12, 1')
r('s_lshl_b32 s16, s16, 5')
r('s_add_u32 s15, s15, s16')
r('v_and_b32 v4, 31, v1')
r('v_add_u32 v4, s15, v4')
r('v_mul_u32_u24 v4, 896, v4')
r('s_and_b32 s16, s12, 1')
r('s_mul_i32 s16, s16, 448')
r('s_lshl_b32 s17, s13, 5')
r('s_add_u32 s16, s16, s17')
r('v_lshrrev_b32 v5, 5, v1')
r('v_lshlrev_b32 v5, 4, v5')
r('v_add3_u32 v4, v4, v5, s16')
for j in range(8): r(f'v_mov_b32 v{80+j}, 0')
for h in range(16):
    for k in range(4):
        src = 8 + 4*h + k
        r(f'v_lshlrev_b32 v6, 16, v{src}')
        r(f'v_and_b32 v7, 0xffff0000, v{src}')
        r(f'v_add_f32 v{80+2*k}, v{80+2*k}, v6')
        r(f'v_add_f32 v{81+2*k}, v{81+2*k}, v7')
for k in range(4):
    r(f'v_cvt_pk_bf16_f32 v{88+k}, v{80+2*k}, v{81+2*k}')
r('buffer_store_dwordx4 v[88:91], v4, s[24:27], 0 offen')
r('s_waitcnt vmcnt(0)')
R.e('L_rend:')
r('s_endpgm')
R.insert_waits(); R.pad_hazards()

KD = lambda name, vg, ao, sg: f""".amdhsa_kernel {name}
  .amdhsa_next_free_vgpr {vg}
  .amdhsa_next_free_sgpr {sg}
  .amdhsa_accum_offset {ao}
  .amdhsa_group_segment_fixed_size 0
  .amdhsa_kernarg_size 64
  .amdhsa_user_sgpr_count 2
  .amdhsa_user_sgpr_kernarg_segment_ptr 1
  .amdhsa_system_sgpr_workgroup_id_x 1
  .amdhsa_float_denorm_mode_32 3
.end_amdhsa_kernel
"""
hdr = open('cdna_kernels/' + NAME + '.s.ref').read().split('; Override launch geometry')[0]
txt = hdr
txt += f"; @launch kernel={NAME}_kernel grid=(256,1,1) block=(256,1,1) lds=163840\n"
txt += f"; @launch kernel=gqa_reduce_kernel grid=(224,1,1) block=(256,1,1) lds=0\n"
txt += '.amdgcn_target "amdgcn-amd-amdhsa--gfx950"\n.text\n'
txt += f".globl {NAME}_kernel\n.p2align 8\n.type {NAME}_kernel,@function\n{NAME}_kernel:\n" + main_text
txt += f".globl gqa_reduce_kernel\n.p2align 8\n.type gqa_reduce_kernel,@function\ngqa_reduce_kernel:\n" + R.text()
txt += '.section .rodata,"a"\n.p2align 6\n' + KD(NAME + '_kernel', 512, 256, 64) + '.p2align 6\n' + KD('gqa_reduce_kernel', 96, 96, 40)
open(sys.argv[1], 'w').write(txt)
from collections import Counter
cnt = Counter(i.kind for i in P.ins)
print('main kernel:', dict(cnt), 'hazard nop states', nn)
```

```python
import sys, math
from asmlib import *

NAME = 'standalone__gqa_block_cached__near_ridge'
OPT = dict(nt_kv=0, nt_w=0, stamp=0, pre_empty=0, post_empty=0)
for a in sys.argv[2:]:
    k, v = a.split('='); OPT[k] = int(v)

XPITCH = 912
RING0 = 65536
RINGSZ = 24576
NPOS = 24
STAT = 61440
PBUF = lambda c: (c % 3) * 16384
OX = 16384
sX, sWQ, sK, sV, sWO, sP = 20, 24, 28, 32, 36, 40
sW, sRING, sSO, sT0, sT1, sC = 44, 45, 46, 47, 48, 49
sXL, sXG = 50, 51
sOB = 52
def srd(n): return f's[{n}:{n+3}]'
vLANE = 1; vLIN = 2
vW = [3, 4, 5, 6]; vK = [7, 8, 9, 10]; vV = [11, 12, 13, 14]; vO = [15, 16, 17, 18, 19, 20, 21]
vXA = 22; vWA = [23, 24]; vKA = [25, 26, 27, 28, 29, 30, 31, 32]; vVA = [33, 34]
vXW = 35
vOA = [[36, 37], [38, 39]]
vOR = 40
vST = 41
vSR = 42
vX1 = 43
vT = list(range(44, 64))
vOACC = 64
vS = 128
def V(n, k=1): return f'v{n}' if k == 1 else f'v[{n}:{n+k-1}]'
def A(n, k=1): return f'a{n}' if k == 1 else f'a[{n}:{n+k-1}]'

P = Prog()
e = P.e

def ntkv(): return ' nt' if OPT['nt_kv'] else ''
def ntw(): return ' nt' if OPT['nt_w'] else ''

NST = [0]
def stamp(real=False):
    if not OPT['stamp']: return
    k = NST[0]; NST[0] += 1
    e('s_waitcnt lgkmcnt(0)')
    e(f"{'s_memrealtime' if real else 's_memtime'} s[{64+2*k}:{65+2*k}]")
    e('s_waitcnt lgkmcnt(0)')

def slot_group_setup(n):
    pos = n % NPOS
    if n < 56:
        so = (n // 4) * 262144
    elif n < 120:
        m = n - 56; h = m // 8; c, dh = h // 2, h % 2
        so = c * 65536 + dh * 256 + ((m % 8) // 4) * 8192
    else:
        m = n - 120
        so = (m // 4) * 16384
    return [Ins(f's_add_u32 m0, s{sRING}, {pos*1024}'), Ins(f's_mov_b32 s{sSO}, {so}')]

def slot_dma(n, need_lds=()):
    j = n % 4
    if n < 56: v, r, nt = vW[j], sWQ, ntw()
    elif n < 120: v, r, nt = vK[j], sK, ntkv()
    else: v, r, nt = vV[j], sV, ntkv()
    off = f' offset:{j*1024}' if j else ''
    return Ins(f'buffer_load_dwordx4 {V(v)}, {srd(r)}, s{sSO} offen{off}{nt} lds', tag=f'S{n}', need_lds=need_lds)

def consumed_tags(n):
    o = n - NPOS
    if o < 0: return ()
    if o < 56: return (f'rw{o//2}',)
    if o < 120: return (f'rk{(o-56)//8}',)
    return (f'rv{(o-120)//2}',)

def issue_slots(ns):
    out = []
    for n in ns:
        su = slot_group_setup(n - n % 4)
        if n % 4 == 0: out += su
        d = slot_dma(n, consumed_tags(n)); d.note = (su[0].text, su[1].text)
        out.append(d)
    return out

WOBUF = {0: ('ring', 16), 1: ('ring', 0), 2: ('ring', 7), 3: ('ring', 16), 4: ('ring', 0), 5: ('ring', 7), 6: ('ring', 16), 7: ('ring', 0)}
def wo_issue(j, need_lds=()):
    kind, pos = WOBUF[j]
    out = []
    for half in range(2):
        su = (f's_add_u32 m0, s{sRING}, {pos*1024 + half*4096}', f's_mov_b32 s{sSO}, {j*28672 + half*4096}')
        out.append(Ins(su[0])); out.append(Ins(su[1]))
        for t in range(4*half, min(7, 4*half+4)):
            off = f' offset:{(t%4)*1024}' if t % 4 else ''
            out.append(Ins(f'buffer_load_dwordx4 {V(vO[t])}, {srd(sWO)}, s{sSO} offen{off}{ntw()} lds', tag=f'WO{j}', need_lds=need_lds, note=su))
    return out

def interleave(mfmas, fillers_by_slot):
    out = []
    for i, m in enumerate(mfmas):
        out.append(m)
        out.extend(fillers_by_slot.get(i, []))
    return out

def spread(dst, items, first, last):
    n = last - first + 1
    for k, it in enumerate(items):
        s = first + (k * n) // len(items)
        dst.setdefault(s, []).append(it)

e(f's_cmp_ge_u32 s2, 256')
e(f's_cbranch_scc1 L_end')
e(f's_load_dwordx16 s[4:19], s[0:1], 0')
if OPT['stamp']:
    e('s_memrealtime s[64:65]'); e('s_memtime s[66:67]'); NST[0] = 2
e(f'v_and_b32 {V(vLANE)}, 63, v0')
e(f'v_lshrrev_b32 {V(vT[0])}, 6, v0')
e(f'v_lshlrev_b32 {V(vLIN)}, 4, {V(vLANE)}')
e(f'v_readfirstlane_b32 s{sW}, {V(vT[0])}')
e('s_and_b32 s53, s2, 7')
e('s_lshr_b32 s54, s2, 3')
e('s_lshr_b32 s55, s54, 2')
e('s_and_b32 s56, s54, 1')
e('s_bfe_u32 s57, s54, 0x10001')
e('s_lshl_b32 s58, s53, 1')
e('s_add_u32 s58, s58, s56')
e(f's_mul_i32 s{sRING}, s{sW}, {RINGSZ}')
e(f's_add_u32 s{sRING}, s{sRING}, {RING0}')
e(f's_mul_i32 s{sXL}, s{sW}, {16*XPITCH}')
e(f's_mul_i32 s{sXG}, s{sW}, {16*896}')
e('s_waitcnt lgkmcnt(0)')
def mk_srd(r, plo, off_sreg, nrec):
    e(f's_add_u32 s{r}, s{plo}, s{off_sreg}')
    e(f's_addc_u32 s{r+1}, s{plo+1}, 0')
    e(f's_and_b32 s{r+1}, s{r+1}, 0xffff')
    e(f's_mov_b32 s{r+2}, {nrec}')
    e(f's_mov_b32 s{r+3}, 0x20000')
e('s_lshl_b32 s59, s55, 1')
e('s_add_u32 s59, s59, s57')
e(f's_mul_i32 s59, s59, {64*896}')
mk_srd(sX, 4, 59, 64*896)
e('s_mov_b32 exec_hi, 0x00ffffff')
for r in range(16):
    e(f's_add_u32 m0, s{sXL}, {r*XPITCH}')
    e(f's_add_u32 s{sSO}, s{sXG}, {r*896}')
    e(f'buffer_load_dwordx4 {V(vLIN)}, {srd(sX)}, s{sSO} offen{ntw()} lds', tag='X')
e('s_mov_b32 exec_hi, -1')
e('s_lshl_b32 s59, s58, 9')
mk_srd(sWQ, 10, 59, 447*8192+512)
t0, t1, t2, t3 = vT[0], vT[1], vT[2], vT[3]
e(f'v_bfe_u32 {V(t0)}, {V(vLANE)}, 4, 1')
e(f'v_lshlrev_b32 {V(t0)}, 2, {V(t0)}')
e(f'v_and_b32 {V(t1)}, 7, {V(vLANE)}')
e(f'v_xor_b32 {V(t0)}, {V(t0)}, {V(t1)}')
e(f'v_lshlrev_b32 {V(t0)}, 4, {V(t0)}')
e(f's_lshl_b32 s{sT0}, s{sW}, 7')
e(f'v_add_u32 {V(t0)}, s{sT0}, {V(t0)}')
e(f'v_lshrrev_b32 {V(t1)}, 3, {V(vLANE)}')
e(f'v_lshl_add_u32 {V(vW[0])}, {V(t1)}, 13, {V(t0)}')
for j in range(1, 4):
    e(f'v_add_u32 {V(vW[j])}, {j*(65536-1024)}, {V(vW[0])}')
P.extend(issue_slots(range(0, 24)))
e(f'v_lshl_add_u32 {V(vV[0])}, {V(t1)}, 9, {V(t0)}')
for j in range(1, 4):
    e(f'v_add_u32 {V(vV[j])}, {j*(4096-1024)}, {V(vV[0])}')
e('s_lshl_b32 s59, s55, 3')
e('s_add_u32 s59, s59, s53')
e('s_lshl_b32 s59, s59, 18')
mk_srd(sK, 6, 59, 262144)
mk_srd(sV, 8, 59, 262144)
e('s_mul_i32 s59, s58, 229376')
mk_srd(sWO, 12, 59, 229376)
e('s_mul_i32 s59, s2, 57344')
mk_srd(sP, 18, 59, 57344)
e(f's_mov_b32 s{sC}, 0x3db8aa3b')
e(f'v_lshrrev_b32 {V(t1)}, 4, {V(vLANE)}')
e(f'v_and_b32 {V(t2)}, 15, {V(vLANE)}')
e(f'v_xor_b32 {V(t2)}, {V(t2)}, {V(t1)}')
e(f's_lshl_b32 s{sT0}, s{sW}, 14')
e(f'v_lshlrev_b32 {V(t1)}, 9, {V(t1)}')
e(f'v_add_u32 {V(t1)}, s{sT0}, {V(t1)}')
for j in range(4):
    e(f'v_xor_b32 {V(t3)}, {4*j}, {V(t2)}')
    e(f'v_lshl_add_u32 {V(vK[j])}, {V(t3)}, 4, {V(t1)}')
    if j: e(f'v_add_u32 {V(vK[j])}, {j*1024}, {V(vK[j])}')
hf, r4, g1, c4, sw = vT[4], vT[5], vT[6], vT[7], vT[8]
e(f'v_lshrrev_b32 {V(hf)}, 5, {V(vLANE)}')
e(f'v_bfe_u32 {V(r4)}, {V(vLANE)}, 2, 2')
e(f'v_bfe_u32 {V(g1)}, {V(vLANE)}, 4, 1')
e(f'v_and_b32 {V(c4)}, 3, {V(vLANE)}')
e(f'v_lshrrev_b32 {V(t0)}, 1, {V(c4)}')
e(f'v_and_b32 {V(t1)}, 1, {V(c4)}')
e(f'v_lshl_or_b32 {V(sw)}, {V(t1)}, 1, {V(t0)}')
e(f'v_and_b32 {V(t0)}, 31, {V(vLANE)}')
e(f'v_mul_u32_u24 {V(vXA)}, {XPITCH}, {V(t0)}')
e(f'v_lshl_add_u32 {V(vXA)}, {V(hf)}, 4, {V(vXA)}')
b64 = vT[9]
e(f'v_lshrrev_b32 {V(b64)}, 1, {V(r4)}')
e(f'v_lshlrev_b32 {V(b64)}, 6, {V(b64)}')
e(f'v_lshlrev_b32 {V(t0)}, 5, {V(g1)}')
e(f'v_lshl_add_u32 {V(t1)}, {V(sw)}, 3, {V(t0)}')
e(f'v_lshl_add_u32 {V(t2)}, {V(c4)}, 3, {V(t0)}')
e(f'v_lshlrev_b32 {V(t3)}, 7, {V(r4)}')
e(f'v_add_u32 {V(t3)}, s{sRING}, {V(t3)}')
for dt in range(2):
    e(f'v_xor_b32 {V(t0)}, {64*dt}, {V(b64)}')
    e(f'v_add3_u32 {V(vWA[dt])}, {V(t0)}, {V(t1)}, {V(t3)}')
    e(f'v_lshl_add_u32 {V(vWA[dt])}, {V(hf)}, 10, {V(vWA[dt])}')
    e(f'v_add3_u32 {V(vVA[dt])}, {V(t0)}, {V(t2)}, {V(t3)}')
    e(f'v_lshl_add_u32 {V(vVA[dt])}, {V(hf)}, 9, {V(vVA[dt])}')
e(f'v_and_b32 {V(t0)}, 15, {V(vLANE)}')
e(f'v_xor_b32 {V(t0)}, {V(t0)}, {V(hf)}')
e(f'v_and_b32 {V(t2)}, 31, {V(vLANE)}')
e(f'v_lshlrev_b32 {V(t2)}, 8, {V(t2)}')
e(f'v_add_u32 {V(t2)}, s{sRING}, {V(t2)}')
for s in range(8):
    e(f'v_xor_b32 {V(t3)}, {2*s}, {V(t0)}')
    e(f'v_lshl_add_u32 {V(vKA[s])}, {V(t3)}, 4, {V(t2)}')
e(f's_lshl_b32 s{sT0}, s{sW}, 12')
e(f'v_add_u32 {V(vXW)}, s{sT0}, {V(vLIN)}')
e(f's_lshr_b32 s{sT0}, s{sW}, 1')
e(f's_lshl_b32 s{sT0}, s{sT0}, 14')
e(f'v_add_u32 {V(vOR)}, s{sT0}, {V(vLIN)}')
e(f'v_and_b32 {V(t0)}, 31, {V(vLANE)}')
e(f'v_lshlrev_b32 {V(t0)}, 4, {V(t0)}')
e(f'v_add_u32 {V(vSR)}, {STAT}, {V(t0)}')
e(f's_lshl_b32 s{sT0}, s{sW}, 2')
e(f'v_add_u32 {V(vST)}, s{sT0}, {V(vSR)}')
e(f'v_lshl_add_u32 {V(t0)}, {V(hf)}, 2, {V(r4)}')
e(f'v_mul_u32_u24 {V(t0)}, 896, {V(t0)}')
e(f'v_add_u32 {V(t0)}, {V(t0)}, {V(t1)}')
e(f's_and_b32 s{sT0}, s{sW}, 1')
e(f's_mul_i32 s{sT1}, s{sT0}, 448')
e(f's_add_u32 s{sT1}, s{sT1}, {RING0}')
e(f'v_add_u32 {V(t0)}, s{sT1}, {V(t0)}')
e(f'v_add_u32 {V(t2)}, {V(t0)}, {V(b64)}')
e(f'v_sub_u32 {V(t3)}, {V(t0)}, {V(b64)}')
e(f's_cmp_eq_u32 s{sT0}, 0')
e(f's_cselect_b64 vcc, -1, 0')
e(f'v_cndmask_b32 {V(vOA[0][0])}, {V(t3)}, {V(t2)}, vcc')
e(f'v_cndmask_b32 {V(vOA[0][1])}, {V(t2)}, {V(t3)}, vcc')
e(f'v_add_u32 {V(vOA[1][0])}, {2*RINGSZ}, {V(vOA[0][0])}')
e(f'v_add_u32 {V(vOA[1][1])}, {2*RINGSZ}, {V(vOA[0][1])}')
for t in range(7):
    e(f'v_add_u32 {V(t0)}, {64*t}, {V(vLANE)}')
    e(f'v_mul_u32_u24 {V(t1)}, 1171, {V(t0)}')
    e(f'v_lshrrev_b32 {V(t1)}, 16, {V(t1)}')
    e(f'v_bfe_u32 {V(t1)}, {V(t1)}, 1, 1')
    e(f'v_lshlrev_b32 {V(t1)}, 6, {V(t1)}')
    e(f'v_xor_b32 {V(vO[t])}, {V(t1)}, {V(vLIN)}')
e(f's_mul_i32 s{sT0}, s{sW}, 7168')
for t in range(7):
    e(f'v_add_u32 {V(vO[t])}, s{sT0}, {V(vO[t])}')

F1 = 128
def p1_reads(s):
    b = F1 + 16*(s % 3)
    pos = (2*s) % NPOS
    out = []
    for qt in range(2):
        out.append(Ins(f'ds_read_b128 {A(b+8+4*qt, 4)}, {V(vXA)} offset:{qt*32*XPITCH + s*32}', tag='rx'))
    for dt in range(2):
        for rd in range(2):
            out.append(Ins(f'ds_read_b64_tr_b16 {A(b+4*dt+2*rd, 2)}, {V(vWA[dt])} offset:{pos*1024 + rd*512}',
                           tag=f'rw{s}', need_vm=(f'S{2*s}', f'S{2*s+1}')))
    return out
stamp()
e('s_barrier', need_vm=('X',))
stamp()
P.extend(p1_reads(0)); P.extend(p1_reads(1))
mf = []; fl = {}
for s in range(28):
    b = F1 + 16*(s % 3)
    for dt in range(2):
        for qt in range(2):
            d = vS + 32*dt + 16*qt
            c = '0' if s == 0 else V(d, 16)
            mf.append(Ins(f'v_mfma_f32_32x32x16_bf16 {V(d,16)}, {A(b+4*dt,4)}, {A(b+8+4*qt,4)}, {c}'))
    if s + 2 < 28:
        spread(fl, p1_reads(s+2), 4*s, 4*s+2)
    G = 6 + (s - 2)//2
    if s >= 2 and G <= 18:
        ns = [4*G, 4*G+1] if s % 2 == 0 else [4*G+2, 4*G+3]
        spread(fl, issue_slots(ns), 4*s+2, 4*s+3)
P.extend(interleave(mf, fl))
stamp()
e('s_barrier', need_lds=('rx',))
P.extend(issue_slots(range(76, 80)))
PK = vT[0]
for dt in range(2):
    for qt in range(2):
        d = vS + 32*dt + 16*qt
        base = PK + 8*((dt*2+qt) % 2)
        for j in range(8):
            e(f'v_cvt_pk_bf16_f32 {V(base+j)}, {V(d+2*j)}, {V(d+2*j+1)}')
        for t in range(2):
            e(f'ds_write_b128 {V(vXW)}, {V(base+4*t,4)} offset:{qt*16384 + (2*dt+t)*1024}', tag='wq')
e('s_barrier', need_lds=('wq',))
def q_read(qt, s):
    return Ins(f'ds_read_b128 {A(64*qt+4*s,4)}, {V(vLIN)} offset:{(qt*16+s)*1024}', tag='rq')

F2 = 128
def k_read(ks):
    h, sp = ks // 8, ks % 8
    pos = (56 + 8*h) % NPOS
    return Ins(f'ds_read_b128 {A(F2+4*(ks%4),4)}, {V(vKA[sp])} offset:{pos*1024}', tag=f'rk{h}',
               need_vm=tuple(f'S{56+8*h+j}' for j in range(8)))
vM = [vT[16], vT[17]]
def max_ops(c):
    out = []
    for qt in range(2):
        d = vS + 32*c + 16*qt
        for j in range(8):
            if c == 0 and j == 0:
                out.append(Ins(f'v_max_f32 {V(vM[qt])}, {V(d)}, {V(d+1)}'))
            else:
                out.append(Ins(f'v_max3_f32 {V(vM[qt])}, {V(d+2*j)}, {V(d+2*j+1)}, {V(vM[qt])}'))
    return out
stamp()
for s in range(4):
    P.add(q_read(0, s)); P.add(q_read(1, s))
for ks in range(3): P.add(k_read(ks))
mf = []; fl = {}
for ks in range(64):
    h, sp = ks // 8, ks % 8
    c, dh = h // 2, h % 2
    s = 8*dh + sp
    for qt in range(2):
        d = vS + 32*c + 16*qt
        cc = '0' if s == 0 else V(d, 16)
        mf.append(Ins(f'v_mfma_f32_32x32x16_bf16 {V(d,16)}, {A(F2+4*(ks%4),4)}, {A(64*qt+4*s,4)}, {cc}'))
    if ks + 3 < 64: fl.setdefault(2*ks, []).append(k_read(ks+3))
    if ks < 12:
        fl.setdefault(2*ks, []).append(q_read(0, ks+4)); fl.setdefault(2*ks+1, []).append(q_read(1, ks+4))
for h in range(1, 8):
    spread(fl, issue_slots(range(80+8*(h-1), 80+8*h)), 16*h+1, 16*h+15)
for c in range(3):
    spread(fl, max_ops(c), 32*(c+1)+6, 32*(c+1)+24)
P.extend(interleave(mf, fl))
stamp()
P.extend(issue_slots(range(136, 144)))
P.extend(max_ops(3))
tA, tB = vT[18], vT[19]
for qt in range(2):
    e(f'v_mov_b32 {V(tA)}, {V(vM[qt])}')
    e(f'v_permlane32_swap_b32 {V(tA)}, {V(vM[qt])}')
    e(f'v_max_f32 {V(vM[qt])}, {V(tA)}, {V(vM[qt])}')
    e(f'ds_write_b32 {V(vST)}, {V(vM[qt])} offset:{qt*512}', tag='wm')
e('s_barrier', need_lds=('wm',))
for qt in range(2):
    e(f'ds_read_b128 {V(vT[4*qt],4)}, {V(vSR)} offset:{qt*512}')
vMC = vM
for qt in range(2):
    b = vT[4*qt]
    e(f'v_max3_f32 {V(tA)}, {V(b)}, {V(b+1)}, {V(b+2)}')
    e(f'v_max_f32 {V(tA)}, {V(tA)}, {V(b+3)}')
    e(f'v_mul_f32 {V(vMC[qt])}, s{sC}, {V(tA)}')
vL = [vT[18], vT[19]]
PKB = vT[0]
def exp_ops(c):
    out = []
    for qt in range(2):
        d = vS + 32*c + 16*qt
        base = PKB + 8*qt
        for j in range(16):
            out.append(Ins(f'v_fma_f32 {V(d+j)}, {V(d+j)}, s{sC}, -{V(vMC[qt])}'))
            out.append(Ins(f'v_exp_f32 {V(d+j)}, {V(d+j)}'))
        for j in range(16):
            if c == 0 and j == 0:
                out.append(Ins(f'v_mov_b32 {V(vL[qt])}, {V(d)}'))
            else:
                out.append(Ins(f'v_add_f32 {V(vL[qt])}, {V(vL[qt])}, {V(d+j)}'))
            if j % 2 == 1:
                out.append(Ins(f'v_cvt_pk_bf16_f32 {V(base+j//2)}, {V(d+j-1)}, {V(d+j)}'))
        for t in range(2):
            out.append(Ins(f'ds_write_b128 {V(vXW)}, {V(base+4*t,4)} offset:{PBUF(c) + (qt*2+t)*1024}', tag=f'wp{c}'))
    return reorder_exp(out)
def reorder_exp(lst):
    res = []
    i = 0
    while i < len(lst):
        if lst[i].mn == 'v_fma_f32' and i + 3 < len(lst) and lst[i+2].mn == 'v_fma_f32':
            res += [lst[i], lst[i+2], lst[i+1], lst[i+3]]; i += 4
        else:
            res.append(lst[i]); i += 1
    return res
def sum_ops():
    out = []
    for qt in range(2):
        tmp = vX1
        out.append(Ins(f'v_mov_b32 {V(tmp)}, {V(vL[qt])}'))
        out.append(Ins(f'v_permlane32_swap_b32 {V(tmp)}, {V(vL[qt])}'))
        out.append(Ins(f'v_add_f32 {V(vL[qt])}, {V(tmp)}, {V(vL[qt])}'))
        out.append(Ins(f'ds_write_b32 {V(vST)}, {V(vL[qt])} offset:{1024 + qt*512}', tag='wl'))
    return out
P.extend(exp_ops(0))

F3 = 0
def v_reads(u):
    b = F3 + 16*(u % 3)
    pos = (120 + 2*u) % NPOS
    out = []
    for dt in range(2):
        for rd in range(2):
            out.append(Ins(f'ds_read_b64_tr_b16 {A(b+4*dt+2*rd,2)}, {V(vVA[dt])} offset:{(pos+rd)*1024}', tag=f'rv{u}',
                           need_vm=(f'S{120+2*u}', f'S{121+2*u}')))
    return out
def p_reads(u):
    b = F3 + 16*(u % 3)
    c, uu = u // 8, u % 8
    wq_, t = uu // 2, uu % 2
    return [Ins(f'ds_read_b128 {A(b+8+4*qt,4)}, {V(vLIN)} offset:{PBUF(c) + wq_*4096 + (qt*2+t)*1024}', tag=f'rp{c}') for qt in range(2)]
stamp()
P.extend(v_reads(0)); P.extend(v_reads(1))
e('s_barrier', need_lds=('wp0',))
P.extend(p_reads(0)); P.extend(p_reads(1))
mf = []; fl = {}
for u in range(32):
    b = F3 + 16*(u % 3)
    for dt in range(2):
        for qt in range(2):
            d = vOACC + 32*dt + 16*qt
            cc = '0' if u == 0 else V(d, 16)
            mf.append(Ins(f'v_mfma_f32_32x32x16_bf16 {V(d,16)}, {A(b+4*dt,4)}, {A(b+8+4*qt,4)}, {cc}'))
for c in range(4):
    s0 = 32*c
    if c < 3:
        ex = exp_ops(c+1)
        if c == 2: ex = ex + sum_ops()
        spread(fl, ex, s0, s0+22)
        fl.setdefault(s0+23, []).append(Ins('s_barrier', need_lds=(f'wp{c+1}', 'wl', f'rp{c-1}') ))
for u in range(32):
    if u + 2 < 32:
        spread(fl, v_reads(u+2), 4*u, 4*u+1)
        pr = p_reads(u+2)
        if u % 8 == 6:
            fl.setdefault(4*u, []).extend(pr)
        elif u % 8 == 7:
            fl.setdefault(4*u+2, []).extend(pr)
        else:
            fl.setdefault(4*u+2, []).extend(pr)
    n0 = 144 + 2*(u-1)
    if u >= 1 and n0 + 1 < 184:
        spread(fl, issue_slots([n0, n0+1]), 4*u+2, 4*u+3)
spread(fl, wo_issue(0, need_lds=tuple(f'rv{k}' for k in range(20, 24))), 4*24+2, 4*27+3)
spread(fl, wo_issue(1, need_lds=tuple(f'rv{k}' for k in range(24, 28))), 4*28+2, 4*30+3)
fl.setdefault(3*32+8, []).append(Ins('s_barrier', need_lds=('rp2',)))
vRL = [vT[16], vT[17]]
lt = []
for qt in range(2):
    lt.append(Ins(f'ds_read_b128 {V(vT[4*qt],4)}, {V(vSR)} offset:{1024 + qt*512}'))
for qt in range(2):
    b = vT[4*qt]
    lt.append(Ins(f'v_add_f32 {V(b)}, {V(b)}, {V(b+1)}'))
    lt.append(Ins(f'v_add_f32 {V(b+2)}, {V(b+2)}, {V(b+3)}'))
    lt.append(Ins(f'v_add_f32 {V(b)}, {V(b)}, {V(b+2)}'))
    lt.append(Ins(f'v_rcp_f32 {V(vRL[qt])}, {V(b)}'))
spread(fl, lt, 3*32+4, 3*32+20)
P.extend(interleave(mf, fl))
stamp()
P.extend(wo_issue(2, need_lds=tuple(f'rv{k}' for k in range(27, 32))))
for dt in range(2):
    for qt in range(2):
        d = vOACC + 32*dt + 16*qt
        base = PK + 8*((dt*2+qt) % 2)
        for j in range(16):
            e(f'v_mul_f32 {V(d+j)}, {V(vRL[qt])}, {V(d+j)}')
        for j in range(8):
            e(f'v_cvt_pk_bf16_f32 {V(base+j)}, {V(d+2*j)}, {V(d+2*j+1)}')
        for t in range(2):
            e(f'ds_write_b128 {V(vXW)}, {V(base+4*t,4)} offset:{OX + qt*16384 + (2*dt+t)*1024}', tag='wo')
e('s_barrier', need_lds=('wo',), need_vm=('WO0',))
FO = 128
for ks in range(16):
    e(f'ds_read_b128 {A(FO+4*ks,4)}, {V(vOR)} offset:{OX + ks*1024}', tag='ro')

F4 = 0
NB4 = 10
def wo_read(i):
    ks, nt = i // 7, i % 7
    j, kk = ks // 2, ks % 2
    kind, pos = WOBUF[j]
    b = F4 + 4*(i % NB4)
    out = []
    for rd in range(2):
        piece = 2*kk + rd
        st, rel = piece // 2, (piece % 2)*RINGSZ + pos*1024
        out.append(Ins(f'ds_read_b64_tr_b16 {A(b+2*rd,2)}, {V(vOA[st][nt%2])} offset:{rel + 64*nt}', tag=f'ro{j}'))
    return out
LEAD = 5
stamp()
for i in range(LEAD): P.extend(wo_read(i))
mf = []; fl = {}
for i in range(112):
    ks, nt = i // 7, i % 7
    d = vS + 16*nt
    cc = '0' if ks == 0 else V(d, 16)
    mf.append(Ins(f'v_mfma_f32_32x32x16_bf16 {V(d,16)}, {A(F4+4*(i%NB4),4)}, {A(FO+4*ks,4)}, {cc}'))
    k = i + LEAD
    if k < 112:
        if k % 14 == 0:
            j = k // 14
            fl.setdefault(i, []).append(Ins('s_barrier', need_vm=(f'WO{j}',), need_lds=(f'ro{j-1}',)))
            if j + 2 < 8:
                pass
        fl.setdefault(i, []).extend(wo_read(k))
        if k % 14 == 0 and k // 14 + 2 < 8 and k // 14 >= 1:
            j = k // 14
            spread(fl, wo_issue(j+2), i+1, i+10)
P.extend(interleave(mf, fl))
stamp()
e(f's_mul_i32 s{sT0}, s{sW}, 14336')
e(f'v_add_u32 {V(vX1)}, s{sT0}, {V(vLIN)}')
for nt in range(7):
    d = vS + 16*nt
    base = PK + 8*(nt % 2)
    for j in range(8):
        e(f'v_cvt_pk_bf16_f32 {V(base+j)}, {V(d+2*j)}, {V(d+2*j+1)}')
    for u in range(2):
        off = (nt*2+u)*1024
        so, io = off & ~4095, off & 4095
        e(f's_mov_b32 s{sSO}, {so}')
        e(f'buffer_store_dwordx4 {V(base+4*u,4)}, {V(vX1)}, {srd(sP)}, s{sSO} offen offset:{io}')
stamp()
e('s_waitcnt vmcnt(0)')
stamp()
stamp(real=True)
if OPT['stamp']:
    e('s_lshl_b32 s59, s2, 2')
    e(f's_add_u32 s59, s59, s{sW}')
    e('s_lshl_b32 s59, s59, 7')
    e('s_add_u32 s59, s59, 0x2000000')
    e('s_add_u32 s60, s18, s59')
    e('s_addc_u32 s61, s19, 0')
    e('v_mov_b32 v2, 0')
    for k in range(NST[0]):
        e(f'v_mov_b32 v4, s{64+2*k}')
        e(f'v_mov_b32 v5, s{65+2*k}')
        e(f'global_store_dwordx2 v2, v[4:5], s[60:61] offset:{8*k}')
    e('s_waitcnt vmcnt(0)')
P.e('L_end:')
e('s_endpgm')

def check_m0(prog):
    m0 = so = None
    for i in prog.ins:
        if i.kind == 'salu' and 'm0' in i.wr: m0 = i.text
        if i.kind == 'salu' and f's{sSO}' in i.wr: so = i.text
        if i.kind == 'dma' and i.note is not None:
            assert (m0, so) == i.note, (i.text, m0, so, i.note)
check_m0(P)
P.insert_waits()
nn = P.pad_hazards()
main_text = P.text()

R = Prog(); r = R.e
r('s_cmp_ge_u32 s2, 224')
r('s_cbranch_scc1 L_rend')
r('s_load_dwordx2 s[4:5], s[0:1], 40')
r('s_load_dwordx2 s[6:7], s[0:1], 56')
r('v_lshrrev_b32 v2, 6, v0')
r('v_and_b32 v1, 63, v0')
r('v_readfirstlane_b32 s8, v2')
r('s_lshl_b32 s9, s2, 2')
r('s_add_u32 s9, s9, s8')
r('s_mul_i32 s10, s9, 1171')
r('s_lshr_b32 s10, s10, 16')
r('s_mul_i32 s11, s10, 56')
r('s_sub_u32 s11, s9, s11')
r('s_mul_i32 s12, s11, 4682')
r('s_lshr_b32 s12, s12, 16')
r('s_mul_i32 s13, s12, 14')
r('s_sub_u32 s13, s11, s13')
r('s_mul_i32 s14, s10, %d' % (16*57344))
r('s_mul_i32 s15, s11, 1024')
r('s_add_u32 s14, s14, s15')
r('s_waitcnt lgkmcnt(0)')
r('s_add_u32 s20, s6, s14')
r('s_addc_u32 s21, s7, 0')
r('s_and_b32 s21, s21, 0xffff')
r('s_mov_b32 s22, %d' % (15*57344 + 1024))
r('s_mov_b32 s23, 0x20000')
r('s_mov_b32 s24, s4')
r('s_and_b32 s25, s5, 0xffff')
r('s_mov_b32 s26, %d' % (1024*896))
r('s_mov_b32 s27, 0x20000')
r('v_lshlrev_b32 v3, 4, v1')
for h in range(16):
    r(f's_mov_b32 s28, {h*57344}')
    r(f'buffer_load_dwordx4 v[{8+4*h}:{11+4*h}], v3, s[20:23], s28 offen')
r('s_lshl_b32 s15, s10, 6')
r('s_lshr_b32 s16, s12, 1')
r('s_lshl_b32 s16, s16, 5')
r('s_add_u32 s15, s15, s16')
r('v_and_b32 v4, 31, v1')
r('v_add_u32 v4, s15, v4')
r('v_mul_u32_u24 v4, 896, v4')
r('s_and_b32 s16, s12, 1')
r('s_mul_i32 s16, s16, 448')
r('s_lshl_b32 s17, s13, 5')
r('s_add_u32 s16, s16, s17')
r('v_lshrrev_b32 v5, 5, v1')
r('v_lshlrev_b32 v5, 4, v5')
r('v_add3_u32 v4, v4, v5, s16')
for j in range(8): r(f'v_mov_b32 v{80+j}, 0')
for h in range(16):
    for k in range(4):
        src = 8 + 4*h + k
        r(f'v_lshlrev_b32 v6, 16, v{src}')
        r(f'v_and_b32 v7, 0xffff0000, v{src}')
        r(f'v_add_f32 v{80+2*k}, v{80+2*k}, v6')
        r(f'v_add_f32 v{81+2*k}, v{81+2*k}, v7')
for k in range(4):
    r(f'v_cvt_pk_bf16_f32 v{88+k}, v{80+2*k}, v{81+2*k}')
r('buffer_store_dwordx4 v[88:91], v4, s[24:27], 0 offen')
r('s_waitcnt vmcnt(0)')
R.e('L_rend:')
r('s_endpgm')
R.insert_waits(); R.pad_hazards()

KD = lambda name, vg, ao, sg: f""".amdhsa_kernel {name}
  .amdhsa_next_free_vgpr {vg}
  .amdhsa_next_free_sgpr {sg}
  .amdhsa_accum_offset {ao}
  .amdhsa_group_segment_fixed_size 0
  .amdhsa_kernarg_size 64
  .amdhsa_user_sgpr_count 2
  .amdhsa_user_sgpr_kernarg_segment_ptr 1
  .amdhsa_system_sgpr_workgroup_id_x 1
  .amdhsa_float_denorm_mode_32 3
.end_amdhsa_kernel
"""
hdr = open('cdna_kernels/' + NAME + '.s.ref').read().split('; Override launch geometry')[0]
txt = hdr
for _ in range(OPT['pre_empty']): txt += "; @launch kernel=gqa_empty_kernel grid=(256,1,1) block=(256,1,1) lds=0\n"
txt += f"; @launch kernel={NAME}_kernel grid=(256,1,1) block=(256,1,1) lds=163840\n"
txt += f"; @launch kernel=gqa_reduce_kernel grid=(224,1,1) block=(256,1,1) lds=0\n"
for _ in range(OPT['post_empty']): txt += "; @launch kernel=gqa_empty_kernel grid=(256,1,1) block=(256,1,1) lds=0\n"
txt += '.amdgcn_target "amdgcn-amd-amdhsa--gfx950"\n.text\n'
txt += f".globl {NAME}_kernel\n.p2align 8\n.type {NAME}_kernel,@function\n{NAME}_kernel:\n" + main_text
txt += f".globl gqa_reduce_kernel\n.p2align 8\n.type gqa_reduce_kernel,@function\ngqa_reduce_kernel:\n" + R.text()
txt += ".globl gqa_empty_kernel\n.p2align 8\n.type gqa_empty_kernel,@function\ngqa_empty_kernel:\n    s_endpgm\n"
txt += '.section .rodata,"a"\n.p2align 6\n' + KD(NAME + '_kernel', 512, 256, 96) + '.p2align 6\n' + KD('gqa_reduce_kernel', 96, 96, 40) + '.p2align 6\n' + KD('gqa_empty_kernel', 8, 8, 16)
open(sys.argv[1], 'w').write(txt)
from collections import Counter
cnt = Counter(i.kind for i in P.ins)
print('nstamps', NST[0]); print('main kernel:', dict(cnt), 'hazard nop states', nn)
```

```python
import sys, math
from asmlib import *

NAME = 'standalone__gqa_block_cached__near_ridge'
OPT = dict(nt_kv=0, nt_w=0, stamp=0, pre_empty=0, post_empty=0)
for a in sys.argv[2:]:
    k, v = a.split('='); OPT[k] = int(v)

XPITCH = 912
RING0 = 65536
RINGSZ = 24576
NPOS = 24
STAT = 61440
PBUF = lambda c: (c % 3) * 16384
OX = 16384
sX, sWQ, sK, sV, sWO, sP = 20, 24, 28, 32, 36, 40
sW, sRING, sSO, sT0, sT1, sC = 44, 45, 46, 47, 48, 49
sXL, sXG = 50, 51
sOB = 52
def srd(n): return f's[{n}:{n+3}]'
vLANE = 1; vLIN = 2
vW = [3, 4, 5, 6]; vK = [7, 8, 9, 10]; vV = [11, 12, 13, 14]; vO = [15, 16, 17, 18, 19, 20, 21]
vXA = 22; vWA = [23, 24]; vKA = [25, 26, 27, 28, 29, 30, 31, 32]; vVA = [33, 34]
vXW = 35
vOA = [[36, 37], [38, 39]]
vOR = 40
vST = 41
vSR = 42
vX1 = 43
vT = list(range(44, 64))
vOACC = 64
vS = 128
def V(n, k=1): return f'v{n}' if k == 1 else f'v[{n}:{n+k-1}]'
def A(n, k=1): return f'a{n}' if k == 1 else f'a[{n}:{n+k-1}]'

P = Prog()
e = P.e

def ntkv(): return ' nt' if OPT['nt_kv'] else ''
def ntw(): return ' nt' if OPT['nt_w'] else ''

NST = [0]
def stamp(real=False):
    if not OPT['stamp']: return
    k = NST[0]; NST[0] += 1
    e('s_waitcnt lgkmcnt(0)')
    e(f"{'s_memrealtime' if real else 's_memtime'} s[{64+2*k}:{65+2*k}]")
    e('s_waitcnt lgkmcnt(0)')

def slot_group_setup(n):
    pos = n % NPOS
    if n < 56:
        so = (n // 4) * 262144
    elif n < 120:
        m = n - 56; h = m // 8; c, dh = h // 2, h % 2
        so = c * 65536 + dh * 256 + ((m % 8) // 4) * 8192
    else:
        m = n - 120
        so = (m // 4) * 16384
    return [Ins(f's_add_u32 m0, s{sRING}, {pos*1024}'), Ins(f's_mov_b32 s{sSO}, {so}')]

def slot_dma(n, need_lds=()):
    j = n % 4
    if n < 56: v, r, nt = vW[j], sWQ, ntw()
    elif n < 120: v, r, nt = vK[j], sK, ntkv()
    else: v, r, nt = vV[j], sV, ntkv()
    off = f' offset:{j*1024}' if j else ''
    return Ins(f'buffer_load_dwordx4 {V(v)}, {srd(r)}, s{sSO} offen{off}{nt} lds', tag=f'S{n}', need_lds=need_lds)

def consumed_tags(n):
    o = n - NPOS
    if o < 0: return ()
    if o < 56: return (f'rw{o//2}',)
    if o < 120: return (f'rk{(o-56)//8}',)
    return (f'rv{(o-120)//2}',)

def issue_slots(ns):
    out = []
    for n in ns:
        su = slot_group_setup(n - n % 4)
        if n % 4 == 0: out += su
        d = slot_dma(n, consumed_tags(n)); d.note = (su[0].text, su[1].text)
        out.append(d)
    return out

WOBUF = {0: ('ring', 16), 1: ('ring', 0), 2: ('ring', 7), 3: ('ring', 16), 4: ('ring', 0), 5: ('ring', 7), 6: ('ring', 16), 7: ('ring', 0)}
def wo_issue(j, need_lds=()):
    kind, pos = WOBUF[j]
    out = []
    for half in range(2):
        su = (f's_add_u32 m0, s{sRING}, {pos*1024 + half*4096}', f's_mov_b32 s{sSO}, {j*28672 + half*4096}')
        out.append(Ins(su[0])); out.append(Ins(su[1]))
        for t in range(4*half, min(7, 4*half+4)):
            off = f' offset:{(t%4)*1024}' if t % 4 else ''
            out.append(Ins(f'buffer_load_dwordx4 {V(vO[t])}, {srd(sWO)}, s{sSO} offen{off}{ntw()} lds', tag=f'WO{j}', need_lds=need_lds, note=su))
    return out

def interleave(mfmas, fillers_by_slot):
    out = []
    for i, m in enumerate(mfmas):
        out.append(m)
        out.extend(fillers_by_slot.get(i, []))
    return out

def spread(dst, items, first, last):
    n = last - first + 1
    for k, it in enumerate(items):
        s = first + (k * n) // len(items)
        dst.setdefault(s, []).append(it)

e(f's_cmp_ge_u32 s2, 256')
e(f's_cbranch_scc1 L_end')
e(f's_load_dwordx16 s[4:19], s[0:1], 0')
if OPT['stamp']:
    e('s_memrealtime s[64:65]'); e('s_memtime s[66:67]'); NST[0] = 2
e(f'v_and_b32 {V(vLANE)}, 63, v0')
e(f'v_lshrrev_b32 {V(vT[0])}, 6, v0')
e(f'v_lshlrev_b32 {V(vLIN)}, 4, {V(vLANE)}')
e(f'v_readfirstlane_b32 s{sW}, {V(vT[0])}')
e('s_and_b32 s53, s2, 7')
e('s_lshr_b32 s54, s2, 3')
e('s_lshr_b32 s55, s54, 2')
e('s_and_b32 s56, s54, 1')
e('s_bfe_u32 s57, s54, 0x10001')
e('s_lshl_b32 s58, s53, 1')
e('s_add_u32 s58, s58, s56')
e(f's_mul_i32 s{sRING}, s{sW}, {RINGSZ}')
e(f's_add_u32 s{sRING}, s{sRING}, {RING0}')
e(f's_mul_i32 s{sXL}, s{sW}, {16*XPITCH}')
e(f's_mul_i32 s{sXG}, s{sW}, {16*896}')
e('s_waitcnt lgkmcnt(0)')
def mk_srd(r, plo, off_sreg, nrec):
    e(f's_add_u32 s{r}, s{plo}, s{off_sreg}')
    e(f's_addc_u32 s{r+1}, s{plo+1}, 0')
    e(f's_and_b32 s{r+1}, s{r+1}, 0xffff')
    e(f's_mov_b32 s{r+2}, {nrec}')
    e(f's_mov_b32 s{r+3}, 0x20000')
e('s_lshl_b32 s59, s55, 1')
e('s_add_u32 s59, s59, s57')
e(f's_mul_i32 s59, s59, {64*896}')
mk_srd(sX, 4, 59, 64*896)
e('s_mov_b32 exec_hi, 0x00ffffff')
for r in range(16):
    e(f's_add_u32 m0, s{sXL}, {r*XPITCH}')
    e(f's_add_u32 s{sSO}, s{sXG}, {r*896}')
    e(f'buffer_load_dwordx4 {V(vLIN)}, {srd(sX)}, s{sSO} offen{ntw()} lds', tag='X')
e('s_mov_b32 exec_hi, -1')
e('s_lshl_b32 s59, s58, 9')
mk_srd(sWQ, 10, 59, 447*8192+512)
t0, t1, t2, t3 = vT[0], vT[1], vT[2], vT[3]
e(f'v_bfe_u32 {V(t0)}, {V(vLANE)}, 4, 1')
e(f'v_lshlrev_b32 {V(t0)}, 2, {V(t0)}')
e(f'v_and_b32 {V(t1)}, 7, {V(vLANE)}')
e(f'v_xor_b32 {V(t0)}, {V(t0)}, {V(t1)}')
e(f'v_lshlrev_b32 {V(t0)}, 4, {V(t0)}')
e(f's_lshl_b32 s{sT0}, s{sW}, 7')
e(f'v_add_u32 {V(t0)}, s{sT0}, {V(t0)}')
e(f'v_lshrrev_b32 {V(t1)}, 3, {V(vLANE)}')
e(f'v_lshl_add_u32 {V(vW[0])}, {V(t1)}, 13, {V(t0)}')
for j in range(1, 4):
    e(f'v_add_u32 {V(vW[j])}, {j*(65536-1024)}, {V(vW[0])}')
P.extend(issue_slots(range(0, 24)))
e(f'v_lshl_add_u32 {V(vV[0])}, {V(t1)}, 9, {V(t0)}')
for j in range(1, 4):
    e(f'v_add_u32 {V(vV[j])}, {j*(4096-1024)}, {V(vV[0])}')
e('s_lshl_b32 s59, s55, 3')
e('s_add_u32 s59, s59, s53')
e('s_lshl_b32 s59, s59, 18')
mk_srd(sK, 6, 59, 262144)
mk_srd(sV, 8, 59, 262144)
e('s_mul_i32 s59, s58, 229376')
mk_srd(sWO, 12, 59, 229376)
e('s_mul_i32 s59, s2, 57344')
mk_srd(sP, 18, 59, 57344)
e(f's_mov_b32 s{sC}, 0x3db8aa3b')
e(f'v_lshrrev_b32 {V(t1)}, 4, {V(vLANE)}')
e(f'v_and_b32 {V(t2)}, 15, {V(vLANE)}')
e(f'v_xor_b32 {V(t2)}, {V(t2)}, {V(t1)}')
e(f's_lshl_b32 s{sT0}, s{sW}, 14')
e(f'v_lshlrev_b32 {V(t1)}, 9, {V(t1)}')
e(f'v_add_u32 {V(t1)}, s{sT0}, {V(t1)}')
for j in range(4):
    e(f'v_xor_b32 {V(t3)}, {4*j}, {V(t2)}')
    e(f'v_lshl_add_u32 {V(vK[j])}, {V(t3)}, 4, {V(t1)}')
    if j: e(f'v_add_u32 {V(vK[j])}, {j*1024}, {V(vK[j])}')
hf, r4, g1, c4, sw = vT[4], vT[5], vT[6], vT[7], vT[8]
e(f'v_lshrrev_b32 {V(hf)}, 5, {V(vLANE)}')
e(f'v_bfe_u32 {V(r4)}, {V(vLANE)}, 2, 2')
e(f'v_bfe_u32 {V(g1)}, {V(vLANE)}, 4, 1')
e(f'v_and_b32 {V(c4)}, 3, {V(vLANE)}')
e(f'v_lshrrev_b32 {V(t0)}, 1, {V(c4)}')
e(f'v_and_b32 {V(t1)}, 1, {V(c4)}')
e(f'v_lshl_or_b32 {V(sw)}, {V(t1)}, 1, {V(t0)}')
e(f'v_and_b32 {V(t0)}, 31, {V(vLANE)}')
e(f'v_mul_u32_u24 {V(vXA)}, {XPITCH}, {V(t0)}')
e(f'v_lshl_add_u32 {V(vXA)}, {V(hf)}, 4, {V(vXA)}')
b64 = vT[9]
e(f'v_lshrrev_b32 {V(b64)}, 1, {V(r4)}')
e(f'v_lshlrev_b32 {V(b64)}, 6, {V(b64)}')
e(f'v_lshlrev_b32 {V(t0)}, 5, {V(g1)}')
e(f'v_lshl_add_u32 {V(t1)}, {V(sw)}, 3, {V(t0)}')
e(f'v_lshl_add_u32 {V(t2)}, {V(c4)}, 3, {V(t0)}')
e(f'v_lshlrev_b32 {V(t3)}, 7, {V(r4)}')
e(f'v_add_u32 {V(t3)}, s{sRING}, {V(t3)}')
for dt in range(2):
    e(f'v_xor_b32 {V(t0)}, {64*dt}, {V(b64)}')
    e(f'v_add3_u32 {V(vWA[dt])}, {V(t0)}, {V(t1)}, {V(t3)}')
    e(f'v_lshl_add_u32 {V(vWA[dt])}, {V(hf)}, 10, {V(vWA[dt])}')
    e(f'v_add3_u32 {V(vVA[dt])}, {V(t0)}, {V(t2)}, {V(t3)}')
    e(f'v_lshl_add_u32 {V(vVA[dt])}, {V(hf)}, 9, {V(vVA[dt])}')
e(f'v_and_b32 {V(t0)}, 15, {V(vLANE)}')
e(f'v_xor_b32 {V(t0)}, {V(t0)}, {V(hf)}')
e(f'v_and_b32 {V(t2)}, 31, {V(vLANE)}')
e(f'v_lshlrev_b32 {V(t2)}, 8, {V(t2)}')
e(f'v_add_u32 {V(t2)}, s{sRING}, {V(t2)}')
for s in range(8):
    e(f'v_xor_b32 {V(t3)}, {2*s}, {V(t0)}')
    e(f'v_lshl_add_u32 {V(vKA[s])}, {V(t3)}, 4, {V(t2)}')
e(f's_lshl_b32 s{sT0}, s{sW}, 12')
e(f'v_add_u32 {V(vXW)}, s{sT0}, {V(vLIN)}')
e(f's_lshr_b32 s{sT0}, s{sW}, 1')
e(f's_lshl_b32 s{sT0}, s{sT0}, 14')
e(f'v_add_u32 {V(vOR)}, s{sT0}, {V(vLIN)}')
e(f'v_and_b32 {V(t0)}, 31, {V(vLANE)}')
e(f'v_lshlrev_b32 {V(t0)}, 4, {V(t0)}')
e(f'v_add_u32 {V(vSR)}, {STAT}, {V(t0)}')
e(f's_lshl_b32 s{sT0}, s{sW}, 2')
e(f'v_add_u32 {V(vST)}, s{sT0}, {V(vSR)}')
e(f'v_lshl_add_u32 {V(t0)}, {V(hf)}, 2, {V(r4)}')
e(f'v_mul_u32_u24 {V(t0)}, 896, {V(t0)}')
e(f'v_add_u32 {V(t0)}, {V(t0)}, {V(t1)}')
e(f's_and_b32 s{sT0}, s{sW}, 1')
e(f's_mul_i32 s{sT1}, s{sT0}, 448')
e(f's_add_u32 s{sT1}, s{sT1}, {RING0}')
e(f'v_add_u32 {V(t0)}, s{sT1}, {V(t0)}')
e(f'v_add_u32 {V(t2)}, {V(t0)}, {V(b64)}')
e(f'v_sub_u32 {V(t3)}, {V(t0)}, {V(b64)}')
e(f's_cmp_eq_u32 s{sT0}, 0')
e(f's_cselect_b64 vcc, -1, 0')
e(f'v_cndmask_b32 {V(vOA[0][0])}, {V(t3)}, {V(t2)}, vcc')
e(f'v_cndmask_b32 {V(vOA[0][1])}, {V(t2)}, {V(t3)}, vcc')
e(f'v_add_u32 {V(vOA[1][0])}, {2*RINGSZ}, {V(vOA[0][0])}')
e(f'v_add_u32 {V(vOA[1][1])}, {2*RINGSZ}, {V(vOA[0][1])}')
for t in range(7):
    e(f'v_add_u32 {V(t0)}, {64*t}, {V(vLANE)}')
    e(f'v_mul_u32_u24 {V(t1)}, 1171, {V(t0)}')
    e(f'v_lshrrev_b32 {V(t1)}, 16, {V(t1)}')
    e(f'v_bfe_u32 {V(t1)}, {V(t1)}, 1, 1')
    e(f'v_lshlrev_b32 {V(t1)}, 6, {V(t1)}')
    e(f'v_xor_b32 {V(vO[t])}, {V(t1)}, {V(vLIN)}')
e(f's_mul_i32 s{sT0}, s{sW}, 7168')
for t in range(7):
    e(f'v_add_u32 {V(vO[t])}, s{sT0}, {V(vO[t])}')

F1 = 128
def p1_reads(s):
    b = F1 + 16*(s % 3)
    pos = (2*s) % NPOS
    out = []
    for qt in range(2):
        out.append(Ins(f'ds_read_b128 {A(b+8+4*qt, 4)}, {V(vXA)} offset:{qt*32*XPITCH + s*32}', tag='rx'))
    for dt in range(2):
        for rd in range(2):
            out.append(Ins(f'ds_read_b64_tr_b16 {A(b+4*dt+2*rd, 2)}, {V(vWA[dt])} offset:{pos*1024 + rd*512}',
                           tag=f'rw{s}', need_vm=(f'S{2*s}', f'S{2*s+1}')))
    return out
stamp()
e('s_barrier', need_vm=('X',))
stamp()
P.extend(p1_reads(0)); P.extend(p1_reads(1))
mf = []; fl = {}
for s in range(28):
    b = F1 + 16*(s % 3)
    for dt in range(2):
        for qt in range(2):
            d = vS + 32*dt + 16*qt
            c = '0' if s == 0 else V(d, 16)
            mf.append(Ins(f'v_mfma_f32_32x32x16_bf16 {V(d,16)}, {A(b+4*dt,4)}, {A(b+8+4*qt,4)}, {c}'))
    if s + 2 < 28:
        spread(fl, p1_reads(s+2), 4*s, 4*s+2)
    G = 6 + (s - 2)//2
    if s >= 2 and G <= 18:
        ns = [4*G, 4*G+1] if s % 2 == 0 else [4*G+2, 4*G+3]
        spread(fl, issue_slots(ns), 4*s+2, 4*s+3)
P.extend(interleave(mf, fl))
stamp()
e('s_barrier', need_lds=('rx',))
P.extend(issue_slots(range(76, 80)))
PK = vT[0]
for dt in range(2):
    for qt in range(2):
        d = vS + 32*dt + 16*qt
        base = PK + 8*((dt*2+qt) % 2)
        for j in range(8):
            e(f'v_cvt_pk_bf16_f32 {V(base+j)}, {V(d+2*j)}, {V(d+2*j+1)}')
        for t in range(2):
            e(f'ds_write_b128 {V(vXW)}, {V(base+4*t,4)} offset:{qt*16384 + (2*dt+t)*1024}', tag='wq')
e('s_barrier', need_lds=('wq',))
def q_read(qt, s):
    return Ins(f'ds_read_b128 {A(64*qt+4*s,4)}, {V(vLIN)} offset:{(qt*16+s)*1024}', tag='rq')

F2 = 128
def k_read(ks):
    h, sp = ks // 8, ks % 8
    pos = (56 + 8*h) % NPOS
    return Ins(f'ds_read_b128 {A(F2+4*(ks%4),4)}, {V(vKA[sp])} offset:{pos*1024}', tag=f'rk{h}',
               need_vm=tuple(f'S{56+8*h+j}' for j in range(8)))
vM = [vT[16], vT[17]]
def max_ops(c):
    out = []
    for qt in range(2):
        d = vS + 32*c + 16*qt
        for j in range(8):
            if c == 0 and j == 0:
                out.append(Ins(f'v_max_f32 {V(vM[qt])}, {V(d)}, {V(d+1)}'))
            else:
                out.append(Ins(f'v_max3_f32 {V(vM[qt])}, {V(d+2*j)}, {V(d+2*j+1)}, {V(vM[qt])}'))
    return out
stamp()
for s in range(4):
    P.add(q_read(0, s)); P.add(q_read(1, s))
for ks in range(3): P.add(k_read(ks))
mf = []; fl = {}
for ks in range(64):
    h, sp = ks // 8, ks % 8
    c, dh = h // 2, h % 2
    s = 8*dh + sp
    for qt in range(2):
        d = vS + 32*c + 16*qt
        cc = '0' if s == 0 else V(d, 16)
        mf.append(Ins(f'v_mfma_f32_32x32x16_bf16 {V(d,16)}, {A(F2+4*(ks%4),4)}, {A(64*qt+4*s,4)}, {cc}'))
    if ks + 3 < 64: fl.setdefault(2*ks, []).append(k_read(ks+3))
    if ks < 12:
        fl.setdefault(2*ks, []).append(q_read(0, ks+4)); fl.setdefault(2*ks+1, []).append(q_read(1, ks+4))
for h in range(1, 8):
    spread(fl, issue_slots(range(80+8*(h-1), 80+8*h)), 16*h+1, 16*h+15)
for c in range(3):
    spread(fl, max_ops(c), 32*(c+1)+6, 32*(c+1)+24)
P.extend(interleave(mf, fl))
stamp()
P.extend(issue_slots(range(136, 144)))
P.extend(max_ops(3))
tA, tB = vT[18], vT[19]
for qt in range(2):
    e(f'v_mov_b32 {V(tA)}, {V(vM[qt])}')
    e(f'v_permlane32_swap_b32 {V(tA)}, {V(vM[qt])}')
    e(f'v_max_f32 {V(vM[qt])}, {V(tA)}, {V(vM[qt])}')
    e(f'ds_write_b32 {V(vST)}, {V(vM[qt])} offset:{qt*512}', tag='wm')
e('s_barrier', need_lds=('wm',))
for qt in range(2):
    e(f'ds_read_b128 {V(vT[4*qt],4)}, {V(vSR)} offset:{qt*512}')
vMC = vM
for qt in range(2):
    b = vT[4*qt]
    e(f'v_max3_f32 {V(tA)}, {V(b)}, {V(b+1)}, {V(b+2)}')
    e(f'v_max_f32 {V(tA)}, {V(tA)}, {V(b+3)}')
    e(f'v_mul_f32 {V(vMC[qt])}, s{sC}, {V(tA)}')
vL = [vT[18], vT[19]]
PKB = vT[0]
def exp_ops(c):
    out = []
    for qt in range(2):
        d = vS + 32*c + 16*qt
        base = PKB + 8*qt
        for j in range(16):
            out.append(Ins(f'v_fma_f32 {V(d+j)}, {V(d+j)}, s{sC}, -{V(vMC[qt])}'))
            out.append(Ins(f'v_exp_f32 {V(d+j)}, {V(d+j)}'))
        for j in range(16):
            if c == 0 and j == 0:
                out.append(Ins(f'v_mov_b32 {V(vL[qt])}, {V(d)}'))
            else:
                out.append(Ins(f'v_add_f32 {V(vL[qt])}, {V(vL[qt])}, {V(d+j)}'))
            if j % 2 == 1:
                out.append(Ins(f'v_cvt_pk_bf16_f32 {V(base+j//2)}, {V(d+j-1)}, {V(d+j)}'))
        for t in range(2):
            out.append(Ins(f'ds_write_b128 {V(vXW)}, {V(base+4*t,4)} offset:{PBUF(c) + (qt*2+t)*1024}', tag=f'wp{c}'))
    return reorder_exp(out)
def reorder_exp(lst):
    res = []
    i = 0
    while i < len(lst):
        if lst[i].mn == 'v_fma_f32' and i + 3 < len(lst) and lst[i+2].mn == 'v_fma_f32':
            res += [lst[i], lst[i+2], lst[i+1], lst[i+3]]; i += 4
        else:
            res.append(lst[i]); i += 1
    return res
def sum_ops():
    out = []
    for qt in range(2):
        tmp = vX1
        out.append(Ins(f'v_mov_b32 {V(tmp)}, {V(vL[qt])}'))
        out.append(Ins(f'v_permlane32_swap_b32 {V(tmp)}, {V(vL[qt])}'))
        out.append(Ins(f'v_add_f32 {V(vL[qt])}, {V(tmp)}, {V(vL[qt])}'))
        out.append(Ins(f'ds_write_b32 {V(vST)}, {V(vL[qt])} offset:{1024 + qt*512}', tag='wl'))
    return out
P.extend(exp_ops(0))

F3 = 0
def v_reads(u):
    b = F3 + 16*(u % 3)
    pos = (120 + 2*u) % NPOS
    out = []
    for dt in range(2):
        for rd in range(2):
            out.append(Ins(f'ds_read_b64_tr_b16 {A(b+4*dt+2*rd,2)}, {V(vVA[dt])} offset:{(pos+rd)*1024}', tag=f'rv{u}',
                           need_vm=(f'S{120+2*u}', f'S{121+2*u}')))
    return out
def p_reads(u):
    b = F3 + 16*(u % 3)
    c, uu = u // 8, u % 8
    wq_, t = uu // 2, uu % 2
    return [Ins(f'ds_read_b128 {A(b+8+4*qt,4)}, {V(vLIN)} offset:{PBUF(c) + wq_*4096 + (qt*2+t)*1024}', tag=f'rp{c}') for qt in range(2)]
stamp()
P.extend(v_reads(0)); P.extend(v_reads(1))
e('s_barrier', need_lds=('wp0',))
P.extend(p_reads(0)); P.extend(p_reads(1))
mf = []; fl = {}
for u in range(32):
    b = F3 + 16*(u % 3)
    for dt in range(2):
        for qt in range(2):
            d = vOACC + 32*dt + 16*qt
            cc = '0' if u == 0 else V(d, 16)
            mf.append(Ins(f'v_mfma_f32_32x32x16_bf16 {V(d,16)}, {A(b+4*dt,4)}, {A(b+8+4*qt,4)}, {cc}'))
for c in range(4):
    s0 = 32*c
    if c < 3:
        ex = exp_ops(c+1)
        if c == 2: ex = ex + sum_ops()
        spread(fl, ex, s0, s0+22)
        fl.setdefault(s0+23, []).append(Ins('s_barrier', need_lds=(f'wp{c+1}', 'wl', f'rp{c-1}') ))
for u in range(32):
    if u + 2 < 32:
        spread(fl, v_reads(u+2), 4*u, 4*u+1)
        pr = p_reads(u+2)
        if u % 8 == 6:
            fl.setdefault(4*u, []).extend(pr)
        elif u % 8 == 7:
            fl.setdefault(4*u+2, []).extend(pr)
        else:
            fl.setdefault(4*u+2, []).extend(pr)
    n0 = 144 + 2*(u-1)
    if u >= 1 and n0 + 1 < 184:
        spread(fl, issue_slots([n0, n0+1]), 4*u+2, 4*u+3)
spread(fl, wo_issue(0, need_lds=tuple(f'rv{k}' for k in range(20, 24))), 4*24+2, 4*27+3)
spread(fl, wo_issue(1, need_lds=tuple(f'rv{k}' for k in range(24, 28))), 4*28+2, 4*30+3)
fl.setdefault(3*32+8, []).append(Ins('s_barrier', need_lds=('rp2',)))
vRL = [vT[16], vT[17]]
lt = []
for qt in range(2):
    lt.append(Ins(f'ds_read_b128 {V(vT[4*qt],4)}, {V(vSR)} offset:{1024 + qt*512}'))
for qt in range(2):
    b = vT[4*qt]
    lt.append(Ins(f'v_add_f32 {V(b)}, {V(b)}, {V(b+1)}'))
    lt.append(Ins(f'v_add_f32 {V(b+2)}, {V(b+2)}, {V(b+3)}'))
    lt.append(Ins(f'v_add_f32 {V(b)}, {V(b)}, {V(b+2)}'))
    lt.append(Ins(f'v_rcp_f32 {V(vRL[qt])}, {V(b)}'))
spread(fl, lt, 3*32+4, 3*32+20)
P.extend(interleave(mf, fl))
stamp()
P.extend(wo_issue(2, need_lds=tuple(f'rv{k}' for k in range(27, 32))))
for dt in range(2):
    for qt in range(2):
        d = vOACC + 32*dt + 16*qt
        base = PK + 8*((dt*2+qt) % 2)
        for j in range(16):
            e(f'v_mul_f32 {V(d+j)}, {V(vRL[qt])}, {V(d+j)}')
        for j in range(8):
            e(f'v_cvt_pk_bf16_f32 {V(base+j)}, {V(d+2*j)}, {V(d+2*j+1)}')
        for t in range(2):
            e(f'ds_write_b128 {V(vXW)}, {V(base+4*t,4)} offset:{OX + qt*16384 + (2*dt+t)*1024}', tag='wo')
e('s_barrier', need_lds=('wo',), need_vm=('WO0',))
FO = 128
for ks in range(16):
    e(f'ds_read_b128 {A(FO+4*ks,4)}, {V(vOR)} offset:{OX + ks*1024}', tag='ro')

F4 = 0
NB4 = 10
def wo_read(i):
    ks, nt = i // 7, i % 7
    j, kk = ks // 2, ks % 2
    kind, pos = WOBUF[j]
    b = F4 + 4*(i % NB4)
    out = []
    for rd in range(2):
        piece = 2*kk + rd
        st, rel = piece // 2, (piece % 2)*RINGSZ + pos*1024
        out.append(Ins(f'ds_read_b64_tr_b16 {A(b+2*rd,2)}, {V(vOA[st][nt%2])} offset:{rel + 64*nt}', tag=f'ro{j}'))
    return out
LEAD = 5
stamp()
for i in range(LEAD): P.extend(wo_read(i))
mf = []; fl = {}
for i in range(112):
    ks, nt = i // 7, i % 7
    d = vS + 16*nt
    cc = '0' if ks == 0 else V(d, 16)
    mf.append(Ins(f'v_mfma_f32_32x32x16_bf16 {V(d,16)}, {A(F4+4*(i%NB4),4)}, {A(FO+4*ks,4)}, {cc}'))
    k = i + LEAD
    if k < 112:
        if k % 14 == 0:
            j = k // 14
            fl.setdefault(i, []).append(Ins('s_barrier', need_vm=(f'WO{j}',), need_lds=(f'ro{j-1}',)))
            if j + 2 < 8:
                pass
        fl.setdefault(i, []).extend(wo_read(k))
        if k % 14 == 0 and k // 14 + 2 < 8 and k // 14 >= 1:
            j = k // 14
            spread(fl, wo_issue(j+2), i+1, i+10)
P.extend(interleave(mf, fl))
stamp()
e(f's_mul_i32 s{sT0}, s{sW}, 14336')
e(f'v_add_u32 {V(vX1)}, s{sT0}, {V(vLIN)}')
for nt in range(7):
    d = vS + 16*nt
    base = PK + 8*(nt % 2)
    for j in range(8):
        e(f'v_cvt_pk_bf16_f32 {V(base+j)}, {V(d+2*j)}, {V(d+2*j+1)}')
    for u in range(2):
        off = (nt*2+u)*1024
        so, io = off & ~4095, off & 4095
        e(f's_mov_b32 s{sSO}, {so}')
        e(f'buffer_store_dwordx4 {V(base+4*u,4)}, {V(vX1)}, {srd(sP)}, s{sSO} offen offset:{io}')
stamp()
e('s_waitcnt vmcnt(0)')
stamp()
stamp(real=True)
if OPT['stamp']:
    e('s_lshl_b32 s59, s2, 2')
    e(f's_add_u32 s59, s59, s{sW}')
    e('s_lshl_b32 s59, s59, 7')
    e('s_add_u32 s59, s59, 0x2000000')
    e('s_add_u32 s60, s18, s59')
    e('s_addc_u32 s61, s19, 0')
    e('v_mov_b32 v2, 0')
    for k in range(NST[0]):
        e(f'v_mov_b32 v4, s{64+2*k}')
        e(f'v_mov_b32 v5, s{65+2*k}')
        e(f'global_store_dwordx2 v2, v[4:5], s[60:61] offset:{8*k}')
    e('s_waitcnt vmcnt(0)')
    if OPT['stamp'] == 2:
        e(f's_or_b32 s59, s2, s{sW}')
        e('s_cmp_eq_u32 s59, 0')
        e('s_cbranch_scc0 L_end')
        e('v_mov_b32 v2, 0')
        n = NST[0]
        for k in range(1, n-2):
            e(f's_sub_u32 s59, s{64+2*(k+1)}, s{64+2*k}')
            e(f'v_mov_b32 v4, s59')
            e(f'global_store_dword v2, v4, s[16:17] offset:{4*(k-1)}')
        e(f's_sub_u32 s59, s{64+2*(n-1)}, s64')
        e(f'v_mov_b32 v4, s59')
        e(f'global_store_dword v2, v4, s[16:17] offset:{4*(n-3)}')
        e('s_waitcnt vmcnt(0)')
P.e('L_end:')
e('s_endpgm')

def check_m0(prog):
    m0 = so = None
    for i in prog.ins:
        if i.kind == 'salu' and 'm0' in i.wr: m0 = i.text
        if i.kind == 'salu' and f's{sSO}' in i.wr: so = i.text
        if i.kind == 'dma' and i.note is not None:
            assert (m0, so) == i.note, (i.text, m0, so, i.note)
check_m0(P)
P.insert_waits()
nn = P.pad_hazards()
main_text = P.text()

R = Prog(); r = R.e
r('s_cmp_ge_u32 s2, 224')
r('s_cbranch_scc1 L_rend')
r('s_load_dwordx2 s[4:5], s[0:1], 40')
r('s_load_dwordx2 s[6:7], s[0:1], 56')
r('v_lshrrev_b32 v2, 6, v0')
r('v_and_b32 v1, 63, v0')
r('v_readfirstlane_b32 s8, v2')
r('s_lshl_b32 s9, s2, 2')
r('s_add_u32 s9, s9, s8')
r('s_mul_i32 s10, s9, 1171')
r('s_lshr_b32 s10, s10, 16')
r('s_mul_i32 s11, s10, 56')
r('s_sub_u32 s11, s9, s11')
r('s_mul_i32 s12, s11, 4682')
r('s_lshr_b32 s12, s12, 16')
r('s_mul_i32 s13, s12, 14')
r('s_sub_u32 s13, s11, s13')
r('s_mul_i32 s14, s10, %d' % (16*57344))
r('s_mul_i32 s15, s11, 1024')
r('s_add_u32 s14, s14, s15')
r('s_waitcnt lgkmcnt(0)')
r('s_add_u32 s20, s6, s14')
r('s_addc_u32 s21, s7, 0')
r('s_and_b32 s21, s21, 0xffff')
r('s_mov_b32 s22, %d' % (15*57344 + 1024))
r('s_mov_b32 s23, 0x20000')
r('s_mov_b32 s24, s4')
r('s_and_b32 s25, s5, 0xffff')
r('s_mov_b32 s26, %d' % (1024*896))
r('s_mov_b32 s27, 0x20000')
r('v_lshlrev_b32 v3, 4, v1')
for h in range(16):
    r(f's_mov_b32 s28, {h*57344}')
    r(f'buffer_load_dwordx4 v[{8+4*h}:{11+4*h}], v3, s[20:23], s28 offen')
r('s_lshl_b32 s15, s10, 6')
r('s_lshr_b32 s16, s12, 1')
r('s_lshl_b32 s16, s16, 5')
r('s_add_u32 s15, s15, s16')
r('v_and_b32 v4, 31, v1')
r('v_add_u32 v4, s15, v4')
r('v_mul_u32_u24 v4, 896, v4')
r('s_and_b32 s16, s12, 1')
r('s_mul_i32 s16, s16, 448')
r('s_lshl_b32 s17, s13, 5')
r('s_add_u32 s16, s16, s17')
r('v_lshrrev_b32 v5, 5, v1')
r('v_lshlrev_b32 v5, 4, v5')
r('v_add3_u32 v4, v4, v5, s16')
for j in range(8): r(f'v_mov_b32 v{80+j}, 0')
for h in range(16):
    for k in range(4):
        src = 8 + 4*h + k
        r(f'v_lshlrev_b32 v6, 16, v{src}')
        r(f'v_and_b32 v7, 0xffff0000, v{src}')
        r(f'v_add_f32 v{80+2*k}, v{80+2*k}, v6')
        r(f'v_add_f32 v{81+2*k}, v{81+2*k}, v7')
for k in range(4):
    r(f'v_cvt_pk_bf16_f32 v{88+k}, v{80+2*k}, v{81+2*k}')
r('buffer_store_dwordx4 v[88:91], v4, s[24:27], 0 offen')
r('s_waitcnt vmcnt(0)')
R.e('L_rend:')
r('s_endpgm')
R.insert_waits(); R.pad_hazards()

KD = lambda name, vg, ao, sg: f""".amdhsa_kernel {name}
  .amdhsa_next_free_vgpr {vg}
  .amdhsa_next_free_sgpr {sg}
  .amdhsa_accum_offset {ao}
  .amdhsa_group_segment_fixed_size 0
  .amdhsa_kernarg_size 64
  .amdhsa_user_sgpr_count 2
  .amdhsa_user_sgpr_kernarg_segment_ptr 1
  .amdhsa_system_sgpr_workgroup_id_x 1
  .amdhsa_float_denorm_mode_32 3
.end_amdhsa_kernel
"""
hdr = open('cdna_kernels/' + NAME + '.s.ref').read().split('; Override launch geometry')[0]
txt = hdr
for _ in range(OPT['pre_empty']): txt += "; @launch kernel=gqa_empty_kernel grid=(256,1,1) block=(256,1,1) lds=0\n"
txt += f"; @launch kernel={NAME}_kernel grid=(256,1,1) block=(256,1,1) lds=163840\n"
txt += f"; @launch kernel=gqa_reduce_kernel grid=(224,1,1) block=(256,1,1) lds=0\n"
for _ in range(OPT['post_empty']): txt += "; @launch kernel=gqa_empty_kernel grid=(256,1,1) block=(256,1,1) lds=0\n"
txt += '.amdgcn_target "amdgcn-amd-amdhsa--gfx950"\n.text\n'
txt += f".globl {NAME}_kernel\n.p2align 8\n.type {NAME}_kernel,@function\n{NAME}_kernel:\n" + main_text
txt += f".globl gqa_reduce_kernel\n.p2align 8\n.type gqa_reduce_kernel,@function\ngqa_reduce_kernel:\n" + R.text()
txt += ".globl gqa_empty_kernel\n.p2align 8\n.type gqa_empty_kernel,@function\ngqa_empty_kernel:\n    s_endpgm\n"
txt += '.section .rodata,"a"\n.p2align 6\n' + KD(NAME + '_kernel', 512, 256, 96) + '.p2align 6\n' + KD('gqa_reduce_kernel', 96, 96, 40) + '.p2align 6\n' + KD('gqa_empty_kernel', 8, 8, 16)
open(sys.argv[1], 'w').write(txt)
from collections import Counter
cnt = Counter(i.kind for i in P.ins)
print('nstamps', NST[0]); print('main kernel:', dict(cnt), 'hazard nop states', nn)
```

```python
import sys, math
from asmlib import *

NAME = 'standalone__gqa_block_cached__near_ridge'
OPT = dict(nt_kv=0, nt_w=0, stamp=0, pre_empty=0, post_empty=0)
for a in sys.argv[2:]:
    k, v = a.split('='); OPT[k] = int(v)

XPITCH = 912
RING0 = 65536
RINGSZ = 24576
NPOS = 24
STAT = 61440
PBUF = lambda c: (c % 3) * 16384
OX = 16384
sX, sWQ, sK, sV, sWO, sP = 20, 24, 28, 32, 36, 40
sW, sRING, sSO, sT0, sT1, sC = 44, 45, 46, 47, 48, 49
sXL, sXG = 50, 51
sOB = 52
def srd(n): return f's[{n}:{n+3}]'
vLANE = 1; vLIN = 2
vW = [3, 4, 5, 6]; vK = [7, 8, 9, 10]; vV = [11, 12, 13, 14]; vO = [15, 16, 17, 18, 19, 20, 21]
vXA = 22; vWA = [23, 24]; vKA = [25, 26, 27, 28, 29, 30, 31, 32]; vVA = [33, 34]
vXW = 35
vOA = [[36, 37], [38, 39]]
vOR = 40
vST = 41
vSR = 42
vX1 = 43
vT = list(range(44, 64))
vOACC = 64
vS = 128
def V(n, k=1): return f'v{n}' if k == 1 else f'v[{n}:{n+k-1}]'
def A(n, k=1): return f'a{n}' if k == 1 else f'a[{n}:{n+k-1}]'

P = Prog()
e = P.e

def ntkv(): return ' nt' if OPT['nt_kv'] else ''
def ntw(): return ' nt' if OPT['nt_w'] else ''

NST = [0]
def stamp(real=False):
    if not OPT['stamp']: return
    k = NST[0]; NST[0] += 1
    e('s_waitcnt lgkmcnt(0)')
    e(f"{'s_memrealtime' if real else 's_memtime'} s[{64+2*k}:{65+2*k}]")
    e('s_waitcnt lgkmcnt(0)')

def slot_group_setup(n):
    pos = n % NPOS
    if n < 56:
        so = (n // 4) * 262144
    elif n < 120:
        m = n - 56; h = m // 8; c, dh = h // 2, h % 2
        so = c * 65536 + dh * 256 + ((m % 8) // 4) * 8192
    else:
        m = n - 120
        so = (m // 4) * 16384
    return [Ins(f's_add_u32 m0, s{sRING}, {pos*1024}'), Ins(f's_mov_b32 s{sSO}, {so}')]

def slot_dma(n, need_lds=()):
    j = n % 4
    if n < 56: v, r, nt = vW[j], sWQ, ntw()
    elif n < 120: v, r, nt = vK[j], sK, ntkv()
    else: v, r, nt = vV[j], sV, ntkv()
    off = f' offset:{j*1024}' if j else ''
    return Ins(f'buffer_load_dwordx4 {V(v)}, {srd(r)}, s{sSO} offen{off}{nt} lds', tag=f'S{n}', need_lds=need_lds)

def consumed_tags(n):
    o = n - NPOS
    if o < 0: return ()
    if o < 56: return (f'rw{o//2}',)
    if o < 120: return (f'rk{(o-56)//8}',)
    return (f'rv{(o-120)//2}',)

def issue_slots(ns):
    out = []
    for n in ns:
        su = slot_group_setup(n - n % 4)
        if n % 4 == 0: out += su
        d = slot_dma(n, consumed_tags(n)); d.note = (su[0].text, su[1].text)
        out.append(d)
    return out

WOBUF = {0: ('ring', 16), 1: ('ring', 0), 2: ('ring', 7), 3: ('ring', 16), 4: ('ring', 0), 5: ('ring', 7), 6: ('ring', 16), 7: ('ring', 0)}
def wo_issue(j, need_lds=()):
    kind, pos = WOBUF[j]
    out = []
    for half in range(2):
        su = (f's_add_u32 m0, s{sRING}, {pos*1024 + half*4096}', f's_mov_b32 s{sSO}, {j*28672 + half*4096}')
        out.append(Ins(su[0])); out.append(Ins(su[1]))
        for t in range(4*half, min(7, 4*half+4)):
            off = f' offset:{(t%4)*1024}' if t % 4 else ''
            out.append(Ins(f'buffer_load_dwordx4 {V(vO[t])}, {srd(sWO)}, s{sSO} offen{off}{ntw()} lds', tag=f'WO{j}', need_lds=need_lds, note=su))
    return out

def interleave(mfmas, fillers_by_slot):
    out = []
    for i, m in enumerate(mfmas):
        out.append(m)
        out.extend(fillers_by_slot.get(i, []))
    return out

def spread(dst, items, first, last):
    n = last - first + 1
    for k, it in enumerate(items):
        s = first + (k * n) // len(items)
        dst.setdefault(s, []).append(it)

e(f's_cmp_ge_u32 s2, 256')
e(f's_cbranch_scc1 L_end')
e(f's_load_dwordx16 s[4:19], s[0:1], 0')
if OPT['stamp']:
    e('s_memrealtime s[64:65]'); e('s_memtime s[66:67]'); NST[0] = 2
e(f'v_and_b32 {V(vLANE)}, 63, v0')
e(f'v_lshrrev_b32 {V(vT[0])}, 6, v0')
e(f'v_lshlrev_b32 {V(vLIN)}, 4, {V(vLANE)}')
e(f'v_readfirstlane_b32 s{sW}, {V(vT[0])}')
e('s_and_b32 s53, s2, 7')
e('s_lshr_b32 s54, s2, 3')
e('s_lshr_b32 s55, s54, 2')
e('s_and_b32 s56, s54, 1')
e('s_bfe_u32 s57, s54, 0x10001')
e('s_lshl_b32 s58, s53, 1')
e('s_add_u32 s58, s58, s56')
e(f's_mul_i32 s{sRING}, s{sW}, {RINGSZ}')
e(f's_add_u32 s{sRING}, s{sRING}, {RING0}')
e(f's_mul_i32 s{sXL}, s{sW}, {16*XPITCH}')
e(f's_mul_i32 s{sXG}, s{sW}, {16*896}')
e('s_waitcnt lgkmcnt(0)')
def mk_srd(r, plo, off_sreg, nrec):
    e(f's_add_u32 s{r}, s{plo}, s{off_sreg}')
    e(f's_addc_u32 s{r+1}, s{plo+1}, 0')
    e(f's_and_b32 s{r+1}, s{r+1}, 0xffff')
    e(f's_mov_b32 s{r+2}, {nrec}')
    e(f's_mov_b32 s{r+3}, 0x20000')
e('s_lshl_b32 s59, s55, 1')
e('s_add_u32 s59, s59, s57')
e(f's_mul_i32 s59, s59, {64*896}')
mk_srd(sX, 4, 59, 64*896)
e('s_mov_b32 exec_hi, 0x00ffffff')
for r in range(16):
    e(f's_add_u32 m0, s{sXL}, {r*XPITCH}')
    e(f's_add_u32 s{sSO}, s{sXG}, {r*896}')
    e(f'buffer_load_dwordx4 {V(vLIN)}, {srd(sX)}, s{sSO} offen{ntw()} lds', tag='X')
e('s_mov_b32 exec_hi, -1')
e('s_lshl_b32 s59, s58, 9')
mk_srd(sWQ, 10, 59, 447*8192+512)
t0, t1, t2, t3 = vT[0], vT[1], vT[2], vT[3]
e(f'v_bfe_u32 {V(t0)}, {V(vLANE)}, 4, 1')
e(f'v_lshlrev_b32 {V(t0)}, 2, {V(t0)}')
e(f'v_and_b32 {V(t1)}, 7, {V(vLANE)}')
e(f'v_xor_b32 {V(t0)}, {V(t0)}, {V(t1)}')
e(f'v_lshlrev_b32 {V(t0)}, 4, {V(t0)}')
e(f's_lshl_b32 s{sT0}, s{sW}, 7')
e(f'v_add_u32 {V(t0)}, s{sT0}, {V(t0)}')
e(f'v_lshrrev_b32 {V(t1)}, 3, {V(vLANE)}')
e(f'v_lshl_add_u32 {V(vW[0])}, {V(t1)}, 13, {V(t0)}')
for j in range(1, 4):
    e(f'v_add_u32 {V(vW[j])}, {j*(65536-1024)}, {V(vW[0])}')
P.extend(issue_slots(range(0, 24)))
e(f'v_lshl_add_u32 {V(vV[0])}, {V(t1)}, 9, {V(t0)}')
for j in range(1, 4):
    e(f'v_add_u32 {V(vV[j])}, {j*(4096-1024)}, {V(vV[0])}')
e('s_lshl_b32 s59, s55, 3')
e('s_add_u32 s59, s59, s53')
e('s_lshl_b32 s59, s59, 18')
mk_srd(sK, 6, 59, 262144)
mk_srd(sV, 8, 59, 262144)
e('s_mul_i32 s59, s58, 229376')
mk_srd(sWO, 12, 59, 229376)
e('s_mul_i32 s59, s2, 57344')
mk_srd(sP, 18, 59, 57344)
e(f's_mov_b32 s{sC}, 0x3db8aa3b')
e(f'v_lshrrev_b32 {V(t1)}, 4, {V(vLANE)}')
e(f'v_and_b32 {V(t2)}, 15, {V(vLANE)}')
e(f'v_xor_b32 {V(t2)}, {V(t2)}, {V(t1)}')
e(f's_lshl_b32 s{sT0}, s{sW}, 14')
e(f'v_lshlrev_b32 {V(t1)}, 9, {V(t1)}')
e(f'v_add_u32 {V(t1)}, s{sT0}, {V(t1)}')
for j in range(4):
    e(f'v_xor_b32 {V(t3)}, {4*j}, {V(t2)}')
    e(f'v_lshl_add_u32 {V(vK[j])}, {V(t3)}, 4, {V(t1)}')
    if j: e(f'v_add_u32 {V(vK[j])}, {j*1024}, {V(vK[j])}')
hf, r4, g1, c4, sw = vT[4], vT[5], vT[6], vT[7], vT[8]
e(f'v_lshrrev_b32 {V(hf)}, 5, {V(vLANE)}')
e(f'v_bfe_u32 {V(r4)}, {V(vLANE)}, 2, 2')
e(f'v_bfe_u32 {V(g1)}, {V(vLANE)}, 4, 1')
e(f'v_and_b32 {V(c4)}, 3, {V(vLANE)}')
e(f'v_lshrrev_b32 {V(t0)}, 1, {V(c4)}')
e(f'v_and_b32 {V(t1)}, 1, {V(c4)}')
e(f'v_lshl_or_b32 {V(sw)}, {V(t1)}, 1, {V(t0)}')
e(f'v_and_b32 {V(t0)}, 31, {V(vLANE)}')
e(f'v_mul_u32_u24 {V(vXA)}, {XPITCH}, {V(t0)}')
e(f'v_lshl_add_u32 {V(vXA)}, {V(hf)}, 4, {V(vXA)}')
b64 = vT[9]
e(f'v_lshrrev_b32 {V(b64)}, 1, {V(r4)}')
e(f'v_lshlrev_b32 {V(b64)}, 6, {V(b64)}')
e(f'v_lshlrev_b32 {V(t0)}, 5, {V(g1)}')
e(f'v_lshl_add_u32 {V(t1)}, {V(sw)}, 3, {V(t0)}')
e(f'v_lshl_add_u32 {V(t2)}, {V(c4)}, 3, {V(t0)}')
e(f'v_lshlrev_b32 {V(t3)}, 7, {V(r4)}')
e(f'v_add_u32 {V(t3)}, s{sRING}, {V(t3)}')
for dt in range(2):
    e(f'v_xor_b32 {V(t0)}, {64*dt}, {V(b64)}')
    e(f'v_add3_u32 {V(vWA[dt])}, {V(t0)}, {V(t1)}, {V(t3)}')
    e(f'v_lshl_add_u32 {V(vWA[dt])}, {V(hf)}, 10, {V(vWA[dt])}')
    e(f'v_add3_u32 {V(vVA[dt])}, {V(t0)}, {V(t2)}, {V(t3)}')
    e(f'v_lshl_add_u32 {V(vVA[dt])}, {V(hf)}, 9, {V(vVA[dt])}')
e(f'v_and_b32 {V(t0)}, 15, {V(vLANE)}')
e(f'v_xor_b32 {V(t0)}, {V(t0)}, {V(hf)}')
e(f'v_and_b32 {V(t2)}, 31, {V(vLANE)}')
e(f'v_lshlrev_b32 {V(t2)}, 8, {V(t2)}')
e(f'v_add_u32 {V(t2)}, s{sRING}, {V(t2)}')
for s in range(8):
    e(f'v_xor_b32 {V(t3)}, {2*s}, {V(t0)}')
    e(f'v_lshl_add_u32 {V(vKA[s])}, {V(t3)}, 4, {V(t2)}')
e(f's_lshl_b32 s{sT0}, s{sW}, 12')
e(f'v_add_u32 {V(vXW)}, s{sT0}, {V(vLIN)}')
e(f's_lshr_b32 s{sT0}, s{sW}, 1')
e(f's_lshl_b32 s{sT0}, s{sT0}, 14')
e(f'v_add_u32 {V(vOR)}, s{sT0}, {V(vLIN)}')
e(f'v_and_b32 {V(t0)}, 31, {V(vLANE)}')
e(f'v_lshlrev_b32 {V(t0)}, 4, {V(t0)}')
e(f'v_add_u32 {V(vSR)}, {STAT}, {V(t0)}')
e(f's_lshl_b32 s{sT0}, s{sW}, 2')
e(f'v_add_u32 {V(vST)}, s{sT0}, {V(vSR)}')
e(f'v_lshl_add_u32 {V(t0)}, {V(hf)}, 2, {V(r4)}')
e(f'v_mul_u32_u24 {V(t0)}, 896, {V(t0)}')
e(f'v_add_u32 {V(t0)}, {V(t0)}, {V(t1)}')
e(f's_and_b32 s{sT0}, s{sW}, 1')
e(f's_mul_i32 s{sT1}, s{sT0}, 448')
e(f's_add_u32 s{sT1}, s{sT1}, {RING0}')
e(f'v_add_u32 {V(t0)}, s{sT1}, {V(t0)}')
e(f'v_add_u32 {V(t2)}, {V(t0)}, {V(b64)}')
e(f'v_sub_u32 {V(t3)}, {V(t0)}, {V(b64)}')
e(f's_cmp_eq_u32 s{sT0}, 0')
e(f's_cselect_b64 vcc, -1, 0')
e(f'v_cndmask_b32 {V(vOA[0][0])}, {V(t3)}, {V(t2)}, vcc')
e(f'v_cndmask_b32 {V(vOA[0][1])}, {V(t2)}, {V(t3)}, vcc')
e(f'v_add_u32 {V(vOA[1][0])}, {2*RINGSZ}, {V(vOA[0][0])}')
e(f'v_add_u32 {V(vOA[1][1])}, {2*RINGSZ}, {V(vOA[0][1])}')
for t in range(7):
    e(f'v_add_u32 {V(t0)}, {64*t}, {V(vLANE)}')
    e(f'v_mul_u32_u24 {V(t1)}, 1171, {V(t0)}')
    e(f'v_lshrrev_b32 {V(t1)}, 16, {V(t1)}')
    e(f'v_bfe_u32 {V(t1)}, {V(t1)}, 1, 1')
    e(f'v_lshlrev_b32 {V(t1)}, 6, {V(t1)}')
    e(f'v_xor_b32 {V(vO[t])}, {V(t1)}, {V(vLIN)}')
e(f's_mul_i32 s{sT0}, s{sW}, 7168')
for t in range(7):
    e(f'v_add_u32 {V(vO[t])}, s{sT0}, {V(vO[t])}')

F1 = 128
def p1_reads(s):
    b = F1 + 16*(s % 3)
    pos = (2*s) % NPOS
    out = []
    for qt in range(2):
        out.append(Ins(f'ds_read_b128 {A(b+8+4*qt, 4)}, {V(vXA)} offset:{qt*32*XPITCH + s*32}', tag='rx'))
    for dt in range(2):
        for rd in range(2):
            out.append(Ins(f'ds_read_b64_tr_b16 {A(b+4*dt+2*rd, 2)}, {V(vWA[dt])} offset:{pos*1024 + rd*512}',
                           tag=f'rw{s}', need_vm=(f'S{2*s}', f'S{2*s+1}')))
    return out
stamp()
e('s_barrier', need_vm=('X',))
stamp()
P.extend(p1_reads(0)); P.extend(p1_reads(1))
mf = []; fl = {}
for s in range(28):
    b = F1 + 16*(s % 3)
    for dt in range(2):
        for qt in range(2):
            d = vS + 32*dt + 16*qt
            c = '0' if s == 0 else V(d, 16)
            mf.append(Ins(f'v_mfma_f32_32x32x16_bf16 {V(d,16)}, {A(b+4*dt,4)}, {A(b+8+4*qt,4)}, {c}'))
    if s + 2 < 28:
        spread(fl, p1_reads(s+2), 4*s, 4*s+2)
    G = 6 + (s - 2)//2
    if s >= 2 and G <= 18:
        ns = [4*G, 4*G+1] if s % 2 == 0 else [4*G+2, 4*G+3]
        spread(fl, issue_slots(ns), 4*s+2, 4*s+3)
P.extend(interleave(mf, fl))
stamp()
e('s_barrier', need_lds=('rx',))
P.extend(issue_slots(range(76, 80)))
PK = vT[0]
for dt in range(2):
    for qt in range(2):
        d = vS + 32*dt + 16*qt
        base = PK + 8*((dt*2+qt) % 2)
        for j in range(8):
            e(f'v_cvt_pk_bf16_f32 {V(base+j)}, {V(d+2*j)}, {V(d+2*j+1)}')
        for t in range(2):
            e(f'ds_write_b128 {V(vXW)}, {V(base+4*t,4)} offset:{qt*16384 + (2*dt+t)*1024}', tag='wq')
e('s_barrier', need_lds=('wq',))
def q_read(qt, s):
    return Ins(f'ds_read_b128 {A(64*qt+4*s,4)}, {V(vLIN)} offset:{(qt*16+s)*1024}', tag='rq')

F2 = 128
def k_read(ks):
    h, sp = ks // 8, ks % 8
    pos = (56 + 8*h) % NPOS
    return Ins(f'ds_read_b128 {A(F2+4*(ks%4),4)}, {V(vKA[sp])} offset:{pos*1024}', tag=f'rk{h}',
               need_vm=tuple(f'S{56+8*h+j}' for j in range(8)))
vM = [vT[16], vT[17]]
def max_ops(c):
    out = []
    for qt in range(2):
        d = vS + 32*c + 16*qt
        for j in range(8):
            if c == 0 and j == 0:
                out.append(Ins(f'v_max_f32 {V(vM[qt])}, {V(d)}, {V(d+1)}'))
            else:
                out.append(Ins(f'v_max3_f32 {V(vM[qt])}, {V(d+2*j)}, {V(d+2*j+1)}, {V(vM[qt])}'))
    return out
stamp()
for s in range(4):
    P.add(q_read(0, s)); P.add(q_read(1, s))
for ks in range(3): P.add(k_read(ks))
mf = []; fl = {}
for ks in range(64):
    h, sp = ks // 8, ks % 8
    c, dh = h // 2, h % 2
    s = 8*dh + sp
    for qt in range(2):
        d = vS + 32*c + 16*qt
        cc = '0' if s == 0 else V(d, 16)
        mf.append(Ins(f'v_mfma_f32_32x32x16_bf16 {V(d,16)}, {A(F2+4*(ks%4),4)}, {A(64*qt+4*s,4)}, {cc}'))
    if ks + 3 < 64: fl.setdefault(2*ks, []).append(k_read(ks+3))
    if ks < 12:
        fl.setdefault(2*ks, []).append(q_read(0, ks+4)); fl.setdefault(2*ks+1, []).append(q_read(1, ks+4))
for h in range(1, 8):
    spread(fl, issue_slots(range(80+8*(h-1), 80+8*h)), 16*h+1, 16*h+15)
for c in range(3):
    spread(fl, max_ops(c), 32*(c+1)+6, 32*(c+1)+24)
P.extend(interleave(mf, fl))
stamp()
P.extend(issue_slots(range(136, 144)))
P.extend(max_ops(3))
tA, tB = vT[18], vT[19]
for qt in range(2):
    e(f'v_mov_b32 {V(tA)}, {V(vM[qt])}')
    e(f'v_permlane32_swap_b32 {V(tA)}, {V(vM[qt])}')
    e(f'v_max_f32 {V(vM[qt])}, {V(tA)}, {V(vM[qt])}')
    e(f'ds_write_b32 {V(vST)}, {V(vM[qt])} offset:{qt*512}', tag='wm')
e('s_barrier', need_lds=('wm',))
for qt in range(2):
    e(f'ds_read_b128 {V(vT[4*qt],4)}, {V(vSR)} offset:{qt*512}')
vMC = vM
for qt in range(2):
    b = vT[4*qt]
    e(f'v_max3_f32 {V(tA)}, {V(b)}, {V(b+1)}, {V(b+2)}')
    e(f'v_max_f32 {V(tA)}, {V(tA)}, {V(b+3)}')
    e(f'v_mul_f32 {V(vMC[qt])}, s{sC}, {V(tA)}')
vL = [vT[18], vT[19]]
PKB = vT[0]
def exp_ops(c):
    out = []
    for qt in range(2):
        d = vS + 32*c + 16*qt
        base = PKB + 8*qt
        for j in range(16):
            out.append(Ins(f'v_fma_f32 {V(d+j)}, {V(d+j)}, s{sC}, -{V(vMC[qt])}'))
            out.append(Ins(f'v_exp_f32 {V(d+j)}, {V(d+j)}'))
        for j in range(16):
            if c == 0 and j == 0:
                out.append(Ins(f'v_mov_b32 {V(vL[qt])}, {V(d)}'))
            else:
                out.append(Ins(f'v_add_f32 {V(vL[qt])}, {V(vL[qt])}, {V(d+j)}'))
            if j % 2 == 1:
                out.append(Ins(f'v_cvt_pk_bf16_f32 {V(base+j//2)}, {V(d+j-1)}, {V(d+j)}'))
        for t in range(2):
            out.append(Ins(f'ds_write_b128 {V(vXW)}, {V(base+4*t,4)} offset:{PBUF(c) + (qt*2+t)*1024}', tag=f'wp{c}'))
    return reorder_exp(out)
def reorder_exp(lst):
    res = []
    i = 0
    while i < len(lst):
        if lst[i].mn == 'v_fma_f32' and i + 3 < len(lst) and lst[i+2].mn == 'v_fma_f32':
            res += [lst[i], lst[i+2], lst[i+1], lst[i+3]]; i += 4
        else:
            res.append(lst[i]); i += 1
    return res
def sum_ops():
    out = []
    for qt in range(2):
        tmp = vX1
        out.append(Ins(f'v_mov_b32 {V(tmp)}, {V(vL[qt])}'))
        out.append(Ins(f'v_permlane32_swap_b32 {V(tmp)}, {V(vL[qt])}'))
        out.append(Ins(f'v_add_f32 {V(vL[qt])}, {V(tmp)}, {V(vL[qt])}'))
        out.append(Ins(f'ds_write_b32 {V(vST)}, {V(vL[qt])} offset:{1024 + qt*512}', tag='wl'))
    return out
P.extend(exp_ops(0))

F3 = 0
def v_reads(u):
    b = F3 + 16*(u % 3)
    pos = (120 + 2*u) % NPOS
    out = []
    for dt in range(2):
        for rd in range(2):
            out.append(Ins(f'ds_read_b64_tr_b16 {A(b+4*dt+2*rd,2)}, {V(vVA[dt])} offset:{(pos+rd)*1024}', tag=f'rv{u}',
                           need_vm=(f'S{120+2*u}', f'S{121+2*u}')))
    return out
def p_reads(u):
    b = F3 + 16*(u % 3)
    c, uu = u // 8, u % 8
    wq_, t = uu // 2, uu % 2
    return [Ins(f'ds_read_b128 {A(b+8+4*qt,4)}, {V(vLIN)} offset:{PBUF(c) + wq_*4096 + (qt*2+t)*1024}', tag=f'rp{c}') for qt in range(2)]
stamp()
P.extend(v_reads(0)); P.extend(v_reads(1))
e('s_barrier', need_lds=('wp0',))
P.extend(p_reads(0)); P.extend(p_reads(1))
mf = []; fl = {}
for u in range(32):
    b = F3 + 16*(u % 3)
    for dt in range(2):
        for qt in range(2):
            d = vOACC + 32*dt + 16*qt
            cc = '0' if u == 0 else V(d, 16)
            mf.append(Ins(f'v_mfma_f32_32x32x16_bf16 {V(d,16)}, {A(b+4*dt,4)}, {A(b+8+4*qt,4)}, {cc}'))
for c in range(4):
    s0 = 32*c
    if c < 3:
        ex = exp_ops(c+1)
        if c == 2: ex = ex + sum_ops()
        spread(fl, ex, s0, s0+22)
        fl.setdefault(s0+23, []).append(Ins('s_barrier', need_lds=(f'wp{c+1}', 'wl', f'rp{c-1}') ))
for u in range(32):
    if u + 2 < 32:
        spread(fl, v_reads(u+2), 4*u, 4*u+1)
        pr = p_reads(u+2)
        if u % 8 == 6:
            fl.setdefault(4*u, []).extend(pr)
        elif u % 8 == 7:
            fl.setdefault(4*u+2, []).extend(pr)
        else:
            fl.setdefault(4*u+2, []).extend(pr)
    n0 = 144 + 2*(u-1)
    if u >= 1 and n0 + 1 < 184:
        spread(fl, issue_slots([n0, n0+1]), 4*u+2, 4*u+3)
spread(fl, wo_issue(0, need_lds=tuple(f'rv{k}' for k in range(20, 24))), 4*24+2, 4*27+3)
spread(fl, wo_issue(1, need_lds=tuple(f'rv{k}' for k in range(24, 28))), 4*28+2, 4*30+3)
fl.setdefault(3*32+8, []).append(Ins('s_barrier', need_lds=('rp2',)))
vRL = [vT[16], vT[17]]
lt = []
for qt in range(2):
    lt.append(Ins(f'ds_read_b128 {V(vT[4*qt],4)}, {V(vSR)} offset:{1024 + qt*512}'))
for qt in range(2):
    b = vT[4*qt]
    lt.append(Ins(f'v_add_f32 {V(b)}, {V(b)}, {V(b+1)}'))
    lt.append(Ins(f'v_add_f32 {V(b+2)}, {V(b+2)}, {V(b+3)}'))
    lt.append(Ins(f'v_add_f32 {V(b)}, {V(b)}, {V(b+2)}'))
    lt.append(Ins(f'v_rcp_f32 {V(vRL[qt])}, {V(b)}'))
spread(fl, lt, 3*32+4, 3*32+20)
P.extend(interleave(mf, fl))
stamp()
P.extend(wo_issue(2, need_lds=tuple(f'rv{k}' for k in range(27, 32))))
for dt in range(2):
    for qt in range(2):
        d = vOACC + 32*dt + 16*qt
        base = PK + 8*((dt*2+qt) % 2)
        for j in range(16):
            e(f'v_mul_f32 {V(d+j)}, {V(vRL[qt])}, {V(d+j)}')
        for j in range(8):
            e(f'v_cvt_pk_bf16_f32 {V(base+j)}, {V(d+2*j)}, {V(d+2*j+1)}')
        for t in range(2):
            e(f'ds_write_b128 {V(vXW)}, {V(base+4*t,4)} offset:{OX + qt*16384 + (2*dt+t)*1024}', tag='wo')
e('s_barrier', need_lds=('wo',), need_vm=('WO0',))
FO = 128
for ks in range(16):
    e(f'ds_read_b128 {A(FO+4*ks,4)}, {V(vOR)} offset:{OX + ks*1024}', tag='ro')

F4 = 0
NB4 = 10
def wo_read(i):
    ks, nt = i // 7, i % 7
    j, kk = ks // 2, ks % 2
    kind, pos = WOBUF[j]
    b = F4 + 4*(i % NB4)
    out = []
    for rd in range(2):
        piece = 2*kk + rd
        st, rel = piece // 2, (piece % 2)*RINGSZ + pos*1024
        out.append(Ins(f'ds_read_b64_tr_b16 {A(b+2*rd,2)}, {V(vOA[st][nt%2])} offset:{rel + 64*nt}', tag=f'ro{j}'))
    return out
LEAD = 5
stamp()
for i in range(LEAD): P.extend(wo_read(i))
mf = []; fl = {}
for i in range(112):
    ks, nt = i // 7, i % 7
    d = vS + 16*nt
    cc = '0' if ks == 0 else V(d, 16)
    mf.append(Ins(f'v_mfma_f32_32x32x16_bf16 {V(d,16)}, {A(F4+4*(i%NB4),4)}, {A(FO+4*ks,4)}, {cc}'))
    k = i + LEAD
    if k < 112:
        if k % 14 == 0:
            j = k // 14
            fl.setdefault(i, []).append(Ins('s_barrier', need_vm=(f'WO{j}',), need_lds=(f'ro{j-1}',)))
            if j + 2 < 8:
                pass
        fl.setdefault(i, []).extend(wo_read(k))
        if k % 14 == 0 and k // 14 + 2 < 8 and k // 14 >= 1:
            j = k // 14
            spread(fl, wo_issue(j+2), i+1, i+10)
P.extend(interleave(mf, fl))
stamp()
e(f's_mul_i32 s{sT0}, s{sW}, 14336')
e(f'v_add_u32 {V(vX1)}, s{sT0}, {V(vLIN)}')
for nt in range(7):
    d = vS + 16*nt
    base = PK + 8*(nt % 2)
    for j in range(8):
        e(f'v_cvt_pk_bf16_f32 {V(base+j)}, {V(d+2*j)}, {V(d+2*j+1)}')
    for u in range(2):
        off = (nt*2+u)*1024
        so, io = off & ~4095, off & 4095
        e(f's_mov_b32 s{sSO}, {so}')
        e(f'buffer_store_dwordx4 {V(base+4*u,4)}, {V(vX1)}, {srd(sP)}, s{sSO} offen offset:{io}')
stamp()
e('s_waitcnt vmcnt(0)')
stamp()
stamp(real=True)
if OPT['stamp']:
    e('s_lshl_b32 s59, s2, 2')
    e(f's_add_u32 s59, s59, s{sW}')
    e('s_lshl_b32 s59, s59, 7' if OPT['stamp'] == 1 else 's_lshl_b32 s59, s59, 8')
    e('s_add_u32 s59, s59, 0x2000000')
    e('s_add_u32 s60, s18, s59')
    e('s_addc_u32 s61, s19, 0')
    e('v_mov_b32 v2, 0')
    for k in range(NST[0]):
        e(f'v_mov_b32 v4, s{64+2*k}')
        e(f'v_mov_b32 v5, s{65+2*k}')
        e(f'global_store_dwordx2 v2, v[4:5], s[60:61] offset:{8*k}')
    e('s_waitcnt vmcnt(0)')
    if OPT['stamp'] == 2:
        e(f's_or_b32 s59, s2, s{sW}')
        e('s_cmp_eq_u32 s59, 0')
        e('s_cbranch_scc0 L_end')
        e('v_mov_b32 v2, 0')
        n = NST[0]
        for k in range(1, n-2):
            e(f's_sub_u32 s59, s{64+2*(k+1)}, s{64+2*k}')
            e(f'v_mov_b32 v4, s59')
            e(f'global_store_dword v2, v4, s[16:17] offset:{4*(k-1)}')
            e(f'global_store_dword v2, v4, s[60:61] offset:{128+4*(k-1)}')
        e(f's_sub_u32 s59, s{64+2*(n-1)}, s64')
        e(f'v_mov_b32 v4, s59')
        e(f'global_store_dword v2, v4, s[16:17] offset:{4*(n-3)}')
        e(f'global_store_dword v2, v4, s[60:61] offset:{128+4*(n-3)}')
        e('s_waitcnt vmcnt(0)')
P.e('L_end:')
e('s_endpgm')

def check_m0(prog):
    m0 = so = None
    for i in prog.ins:
        if i.kind == 'salu' and 'm0' in i.wr: m0 = i.text
        if i.kind == 'salu' and f's{sSO}' in i.wr: so = i.text
        if i.kind == 'dma' and i.note is not None:
            assert (m0, so) == i.note, (i.text, m0, so, i.note)
check_m0(P)
P.insert_waits()
nn = P.pad_hazards()
main_text = P.text()

R = Prog(); r = R.e
r('s_cmp_ge_u32 s2, 224')
r('s_cbranch_scc1 L_rend')
r('s_load_dwordx2 s[4:5], s[0:1], 40')
r('s_load_dwordx2 s[6:7], s[0:1], 56')
r('v_lshrrev_b32 v2, 6, v0')
r('v_and_b32 v1, 63, v0')
r('v_readfirstlane_b32 s8, v2')
r('s_lshl_b32 s9, s2, 2')
r('s_add_u32 s9, s9, s8')
r('s_mul_i32 s10, s9, 1171')
r('s_lshr_b32 s10, s10, 16')
r('s_mul_i32 s11, s10, 56')
r('s_sub_u32 s11, s9, s11')
r('s_mul_i32 s12, s11, 4682')
r('s_lshr_b32 s12, s12, 16')
r('s_mul_i32 s13, s12, 14')
r('s_sub_u32 s13, s11, s13')
r('s_mul_i32 s14, s10, %d' % (16*57344))
r('s_mul_i32 s15, s11, 1024')
r('s_add_u32 s14, s14, s15')
r('s_waitcnt lgkmcnt(0)')
r('s_add_u32 s20, s6, s14')
r('s_addc_u32 s21, s7, 0')
r('s_and_b32 s21, s21, 0xffff')
r('s_mov_b32 s22, %d' % (15*57344 + 1024))
r('s_mov_b32 s23, 0x20000')
r('s_mov_b32 s24, s4')
r('s_and_b32 s25, s5, 0xffff')
r('s_mov_b32 s26, %d' % (1024*896))
r('s_mov_b32 s27, 0x20000')
r('v_lshlrev_b32 v3, 4, v1')
for h in range(16):
    r(f's_mov_b32 s28, {h*57344}')
    r(f'buffer_load_dwordx4 v[{8+4*h}:{11+4*h}], v3, s[20:23], s28 offen')
r('s_lshl_b32 s15, s10, 6')
r('s_lshr_b32 s16, s12, 1')
r('s_lshl_b32 s16, s16, 5')
r('s_add_u32 s15, s15, s16')
r('v_and_b32 v4, 31, v1')
r('v_add_u32 v4, s15, v4')
r('v_mul_u32_u24 v4, 896, v4')
r('s_and_b32 s16, s12, 1')
r('s_mul_i32 s16, s16, 448')
r('s_lshl_b32 s17, s13, 5')
r('s_add_u32 s16, s16, s17')
r('v_lshrrev_b32 v5, 5, v1')
r('v_lshlrev_b32 v5, 4, v5')
r('v_add3_u32 v4, v4, v5, s16')
for j in range(8): r(f'v_mov_b32 v{80+j}, 0')
for h in range(16):
    for k in range(4):
        src = 8 + 4*h + k
        r(f'v_lshlrev_b32 v6, 16, v{src}')
        r(f'v_and_b32 v7, 0xffff0000, v{src}')
        r(f'v_add_f32 v{80+2*k}, v{80+2*k}, v6')
        r(f'v_add_f32 v{81+2*k}, v{81+2*k}, v7')
for k in range(4):
    r(f'v_cvt_pk_bf16_f32 v{88+k}, v{80+2*k}, v{81+2*k}')
r('buffer_store_dwordx4 v[88:91], v4, s[24:27], 0 offen')
r('s_waitcnt vmcnt(0)')
if OPT['stamp'] == 2:
    r('s_or_b32 s9, s2, s8')
    r('s_cmp_eq_u32 s9, 0')
    r('s_cbranch_scc0 L_rend')
    r('s_load_dwordx2 s[10:11], s[0:1], 48')
    r('s_waitcnt lgkmcnt(0)')
    r('s_add_u32 s6, s6, 0x2000080')
    r('s_addc_u32 s7, s7, 0')
    r('v_lshlrev_b32 v2, 2, v1')
    r('v_cmp_gt_u32 vcc, 16, v1')
    r('s_and_saveexec_b64 s[12:13], vcc')
    r('global_load_dword v3, v2, s[6:7]')
    r('s_waitcnt vmcnt(0)')
    r('global_store_dword v2, v3, s[10:11]')
    r('s_waitcnt vmcnt(0)')
R.e('L_rend:')
r('s_endpgm')
R.insert_waits(); R.pad_hazards()

KD = lambda name, vg, ao, sg: f""".amdhsa_kernel {name}
  .amdhsa_next_free_vgpr {vg}
  .amdhsa_next_free_sgpr {sg}
  .amdhsa_accum_offset {ao}
  .amdhsa_group_segment_fixed_size 0
  .amdhsa_kernarg_size 64
  .amdhsa_user_sgpr_count 2
  .amdhsa_user_sgpr_kernarg_segment_ptr 1
  .amdhsa_system_sgpr_workgroup_id_x 1
  .amdhsa_float_denorm_mode_32 3
.end_amdhsa_kernel
"""
hdr = open('cdna_kernels/' + NAME + '.s.ref').read().split('; Override launch geometry')[0]
txt = hdr
for _ in range(OPT['pre_empty']): txt += "; @launch kernel=gqa_empty_kernel grid=(256,1,1) block=(256,1,1) lds=0\n"
txt += f"; @launch kernel={NAME}_kernel grid=(256,1,1) block=(256,1,1) lds=163840\n"
txt += f"; @launch kernel=gqa_reduce_kernel grid=(224,1,1) block=(256,1,1) lds=0\n"
for _ in range(OPT['post_empty']): txt += "; @launch kernel=gqa_empty_kernel grid=(256,1,1) block=(256,1,1) lds=0\n"
txt += '.amdgcn_target "amdgcn-amd-amdhsa--gfx950"\n.text\n'
txt += f".globl {NAME}_kernel\n.p2align 8\n.type {NAME}_kernel,@function\n{NAME}_kernel:\n" + main_text
txt += f".globl gqa_reduce_kernel\n.p2align 8\n.type gqa_reduce_kernel,@function\ngqa_reduce_kernel:\n" + R.text()
txt += ".globl gqa_empty_kernel\n.p2align 8\n.type gqa_empty_kernel,@function\ngqa_empty_kernel:\n    s_endpgm\n"
txt += '.section .rodata,"a"\n.p2align 6\n' + KD(NAME + '_kernel', 512, 256, 96) + '.p2align 6\n' + KD('gqa_reduce_kernel', 96, 96, 40) + '.p2align 6\n' + KD('gqa_empty_kernel', 8, 8, 16)
open(sys.argv[1], 'w').write(txt)
from collections import Counter
cnt = Counter(i.kind for i in P.ins)
print('nstamps', NST[0]); print('main kernel:', dict(cnt), 'hazard nop states', nn)
```

```python
import re

REG_RE = re.compile(r'^(-|abs\()?([vas])(\d+)\)?$')
RNG_RE = re.compile(r'^(-)?([vas])\[(\d+):(\d+)\]$')

def regs_of(op):
    op = op.strip()
    m = REG_RE.match(op)
    if m:
        return [m.group(2) + m.group(3)]
    m = RNG_RE.match(op)
    if m:
        return [m.group(2) + str(i) for i in range(int(m.group(3)), int(m.group(4)) + 1)]
    if op in ('vcc', 'exec', 'm0', 'scc'):
        return [op]
    if op in ('vcc_lo', 'vcc_hi'):
        return ['vcc']
    if op in ('exec_lo', 'exec_hi'):
        return ['exec']
    return []

class Ins:
    __slots__ = ('text', 'mn', 'kind', 'rd', 'wr', 'tag', 'need_vm', 'need_lds', 'note', 'ops')
    def __init__(self, text, tag=None, need_vm=(), need_lds=(), note=None):
        self.text = text
        self.tag = set() if tag is None else (set(tag) if isinstance(tag, (tuple, list, set)) else {tag})
        self.need_vm = tuple(need_vm)
        self.need_lds = tuple(need_lds)
        self.note = note
        t = text.split(';')[0].strip()
        parts = t.split(None, 1)
        self.mn = mn = parts[0] if parts else ''
        rest = parts[1] if len(parts) > 1 else ''
        ops = [o.strip() for o in rest.split(',')] if rest else []
        clean = []
        for o in ops:
            toks = o.split()
            clean.append(toks[0] if toks else '')
        self.ops = clean
        rd, wr = set(), set()
        def R(i):
            if i < len(clean): rd.update(regs_of(clean[i]))
        def W(i):
            if i < len(clean): wr.update(regs_of(clean[i]))
        if mn.endswith(':') or mn.startswith('.') or mn == '':
            self.kind = 'label'
        elif mn.startswith('v_mfma'):
            self.kind = 'mfma'; W(0); R(1); R(2); R(3)
        elif mn.startswith('ds_read'):
            self.kind = 'dsr'; W(0); R(1)
        elif mn.startswith('ds_write'):
            self.kind = 'dsw'
            for i in range(len(clean)): R(i)
        elif mn.startswith('buffer_load') and ' lds' in t:
            self.kind = 'dma'; R(0); R(1); R(2); rd.add('m0')
        elif mn.startswith('buffer_load'):
            self.kind = 'vld'; W(0); R(1); R(2); R(3)
        elif mn.startswith('global_load'):
            self.kind = 'vld'; W(0); R(1); R(2)
        elif mn.startswith('buffer_store') or mn.startswith('global_store'):
            self.kind = 'vst'
            for i in range(len(clean)): R(i)
        elif mn.startswith('buffer_atomic') or mn.startswith('global_atomic'):
            self.kind = 'vst'
            for i in range(len(clean)): R(i)
            if ' sc0' in t:
                self.kind = 'vld'; W(0)
        elif mn in ('buffer_wbl2', 'buffer_inv'):
            self.kind = 'vst'
        elif mn == 's_waitcnt':
            self.kind = 'wait'
        elif mn == 's_barrier':
            self.kind = 'barrier'
        elif mn == 's_nop':
            self.kind = 'nop'
        elif mn.startswith('s_load') or mn.startswith('s_memtime') or mn.startswith('s_memrealtime'):
            self.kind = 'smem'; W(0); R(1)
        elif mn.startswith('s_cbranch') or mn in ('s_branch', 's_endpgm', 's_setprio', 's_sleep'):
            self.kind = 'salu'
            if 'scc' in mn: rd.add('scc')
            if 'vcc' in mn: rd.add('vcc')
            if 'exec' in mn: rd.add('exec')
        elif mn.startswith('s_cmp'):
            self.kind = 'salu'; R(0); R(1); wr.add('scc')
        elif mn.startswith('s_'):
            self.kind = 'salu'; W(0)
            for i in range(1, len(clean)): R(i)
            if mn.startswith(('s_add', 's_sub', 's_and', 's_or', 's_xor', 's_lsh', 's_ashr', 's_bfe', 's_min', 's_max')): wr.add('scc')
            if mn.startswith(('s_addc', 's_subb', 's_cselect')): rd.add('scc')
            if 'saveexec' in mn: wr.add('exec'); rd.add('exec')
        elif mn.startswith('v_cmp'):
            self.kind = 'valu'; W(0); R(1); R(2)
        elif mn.startswith('v_permlane32_swap') or mn.startswith('v_permlane16_swap'):
            self.kind = 'perm'; W(0); W(1); R(0); R(1)
        elif mn.startswith(('v_readfirstlane', 'v_readlane', 'v_writelane')):
            self.kind = 'rdlane'; W(0); R(1); R(2)
        elif mn.startswith('v_'):
            base = mn.replace('_e32', '').replace('_e64', '')
            self.kind = 'trans' if base in ('v_exp_f32', 'v_rcp_f32', 'v_log_f32', 'v_rsq_f32', 'v_sqrt_f32', 'v_rcp_iflag_f32') else 'valu'
            W(0)
            start = 1
            if base in ('v_add_co_u32', 'v_addc_co_u32', 'v_sub_co_u32'):
                W(1); start = 2
            for i in range(start, len(clean)): R(i)
            if base in ('v_fmac_f32', 'v_pk_fmac_f16'): R(0)
            if base == 'v_cndmask_b32' and len(clean) == 3: rd.add('vcc')
            rd.add('exec')
        else:
            raise ValueError('unknown mnemonic: ' + text)
        self.rd, self.wr = rd, wr

def is_valu(i):
    return i.kind in ('valu', 'trans', 'perm', 'rdlane')

class Prog:
    def __init__(self):
        self.ins = []
    def e(self, text, **kw):
        i = Ins(text, **kw)
        self.ins.append(i)
        return i
    def add(self, i):
        self.ins.append(i)
    def extend(self, lst):
        self.ins.extend(lst)

    def insert_waits(self):
        out = []
        lg = []
        vm = []
        def drain(lst, idx):
            del lst[:idx + 1]
        for i in self.ins:
            if i.kind == 'wait':
                m = re.search(r'vmcnt\((\d+)\)', i.text)
                if m:
                    n = int(m.group(1)); del vm[:max(0, len(vm) - n)]
                m = re.search(r'lgkmcnt\((\d+)\)', i.text)
                if m:
                    n = int(m.group(1)); del lg[:max(0, len(lg) - n)]
                out.append(i); continue
            if i.kind == 'label':
                out.append(i); continue
            touch = i.rd | i.wr
            li = -1
            for k, p in enumerate(lg):
                if p.kind == 'dsr' and (p.wr & touch): li = k
                if p.tag & set(i.need_lds): li = k
            if 'ALL' in i.need_lds and lg: li = len(lg) - 1
            vi = -1
            for k, p in enumerate(vm):
                if p.kind == 'vld' and (p.wr & touch): vi = k
                if p.tag & set(i.need_vm): vi = k
            if 'ALL' in i.need_vm and vm: vi = len(vm) - 1
            w = []
            if vi >= 0:
                n = min(len(vm) - 1 - vi, 63); w.append(f'vmcnt({n})'); del vm[:len(vm) - n]
            if li >= 0:
                n = min(len(lg) - 1 - li, 15); w.append(f'lgkmcnt({n})'); del lg[:len(lg) - n]
            if w:
                out.append(Ins('s_waitcnt ' + ' '.join(w)))
            out.append(i)
            if i.kind in ('dsr', 'dsw'): lg.append(i)
            if i.kind in ('dma', 'vld', 'vst'): vm.append(i)
            assert len(vm) <= 63, ('too many outstanding vmem ops', i.text)
        self.ins = out

    def pad_hazards(self):
        out = []
        def states(i):
            if i.kind == 'label': return 0
            if i.kind == 'nop':
                return int(i.ops[0]) + 1
            return 1
        nins = 0
        for i in self.ins:
            if i.kind in ('label',):
                out.append(i); continue
            need = 0
            dist = 0
            for p in reversed(out):
                if dist >= 20: break
                req = 0
                if p.kind != 'label':
                    req = hazard(p, i)
                if req > dist: need = max(need, req - dist)
                dist += states(p)
            while need > 0:
                k = min(need, 16)
                out.append(Ins(f's_nop {k-1}', note='hazard')); nins += k
                need -= k
            out.append(i)
        self.ins = out
        return nins

    def text(self):
        l = []
        for i in self.ins:
            if i.kind == 'label' and i.mn.endswith(':'):
                l.append(i.text)
            else:
                l.append('    ' + i.text)
        return '\n'.join(l) + '\n'

def vregs(s):
    return {r for r in s if r[0] in 'va' and r[1:].isdigit()}
def sregs(s):
    return {r for r in s if (r[0] == 's' and r[1:].isdigit()) or r == 'vcc'}

def mfma_passes(i):
    return 8 if '32x32' in i.mn else 4

def hazard(p, c):
    r = 0
    if p.kind == 'mfma':
        ps = mfma_passes(p)
        d = p.wr
        if c.kind == 'mfma':
            cops = [set(regs_of(o)) for o in c.ops]
            srcc = cops[3] if len(cops) > 3 else set()
            if (cops[1] | cops[2]) & d: r = max(r, 12 if ps == 8 else 8)
            if srcc & d:
                if not (srcc == d and mfma_passes(c) == ps): r = max(r, 10 if ps == 8 else 6)
            elif cops[0] & d:
                r = max(r, 12 if ps == 8 else 8)
        else:
            if (c.rd | c.wr) & d: r = max(r, 12 if ps == 8 else 8)
            if is_valu(c) or c.kind in ('dsr', 'vld'):
                pc = set(regs_of(p.ops[3])) if len(p.ops) > 3 else set()
                if c.wr & pc: r = max(r, 7 if ps == 8 else 3)
    if is_valu(p):
        pw = vregs(p.wr)
        if c.kind == 'mfma' and (pw & c.rd): r = max(r, 2)
        if c.kind == 'perm' and (pw & c.rd): r = max(r, 2)
        if c.kind == 'rdlane' and (pw & c.rd): r = max(r, 1)
        if p.kind == 'trans' and is_valu(c) and (pw & c.rd): r = max(r, 1)
        ps_ = sregs(p.wr)
        if ps_:
            if c.kind in ('dma', 'vld', 'vst') and (ps_ & c.rd): r = max(r, 5)
            if is_valu(c) and (ps_ & c.rd): r = max(r, 2)
            if c.kind == 'salu' and (ps_ & c.rd): r = max(r, 4)
        if 'exec' in p.wr and (c.kind == 'mfma' or is_valu(c)): r = max(r, 4)
    if p.kind == 'salu' and 'm0' in p.wr and c.kind == 'dma': r = max(r, 1)
    if p.kind == 'salu' and 'exec' in p.wr and c.kind == 'mfma': r = max(r, 4)
    if p.kind == 'vst' and 'x4' in p.mn and is_valu(c):
        if vregs(p.rd) & c.wr: r = max(r, 2)
    return r
```

```python
import sys
from asmlib import *

NAME = 'standalone__gqa_block_cached__near_ridge'
OPT = dict(nt_kv=0, nt_w=0, nt_x=0, stamp=0, pf=0, pf_nt=1, st_sc1=1, st_nt=0, init_slots=8, pfsched=0, red_sc1=0, red_nt=0, rot_kv=0, rot_wq=0, rot_wo=0, nodma=0, lead4=4, dmaonly=0)
for a in sys.argv[2:]:
    k, v = a.split('='); OPT[k] = int(v)

XPITCH = 912
RING0 = 65536
RINGSZ = 24576
NPOS = 24
STAT = 61440
PBUF = lambda c: (c % 3) * 16384
OX = 16384
sX, sWQ, sK, sV, sWO, sP = 20, 24, 28, 32, 36, 40
sW, sRING, sSO, sT0, sT1, sC = 44, 45, 46, 47, 48, 49
sXL, sXG, sXB = 50, 51, 52
sKC = [80, 81, 82, 83]
sWGQ = 84
sWJ = list(range(85, 92))
def srd(n): return f's[{n}:{n+3}]'
vLANE = 0; vLIN = 1; vXW = 2; vST = 3; vSR = 4
GA = [5, 6, 7, 8]; GB = [9, 10, 11, 12]; GC = list(range(13, 21))
vW = GA; vV = GA; vK = GB; vO = GB
vXA = GC[0]; vWA = [GC[1], GC[2]]
vKA = GC
vVA = [21, 22]
vOA = [GC[0], GC[1], GC[2]]; vOR = GC[3]; vPS = GC[4]
vX1 = 27; vX2 = 26; vX3 = 25; vX4 = 24; vX5 = 23
vT = list(range(28, 48))
FK = 48
vQ = 64
vS = 128
def V(n, k=1): return f'v{n}' if k == 1 else f'v[{n}:{n+k-1}]'

P = Prog(); e = P.e
NST = [0]
def stamp(real=False):
    if not OPT['stamp']: return
    k = NST[0]; NST[0] += 1
    e('s_waitcnt lgkmcnt(0)')
    e(f"{'s_memrealtime' if real else 's_memtime'} s[100:101]")
    e('s_waitcnt lgkmcnt(0)')
    e(f's_mov_b32 s{64+k}, s100')
def nt(k): return ' nt' if OPT[k] else ''

def khalf(h): return (h % 4, h // 4)
WOBUF = {0: ('ring', 16), 1: ('ring', 0), 2: ('ring', 8), 3: ('x', 0), 4: ('x', 32768), 5: ('ring', 16), 6: ('ring', 0)}
def group_setup(n):
    if n < 56:
        m0 = f's_add_u32 m0, s{sRING}, {(n % NPOS)*1024}'
        return (m0, f's_mov_b32 s{sSO}, s{sWGQ}')
    elif n < 120:
        m = n - 56; c, dh = khalf(m // 8)
        m0 = f's_add_u32 m0, s{sRING}, {(n % NPOS)*1024}'
        return (m0, f's_add_u32 s{sSO}, s{sKC[c]}, {dh * 256 + ((m % 8) // 4) * 8192}')
    elif n < 184:
        m0 = f's_add_u32 m0, s{sRING}, {(n % NPOS)*1024}'
        m = n - 120
        return (m0, f's_add_u32 s{sSO}, s{sKC[m // 16]}, {((m % 16) // 4) * 16384}')
    else:
        m = n - 184; j, i = m // 8, m % 8
        kind, pos = WOBUF[j]
        if kind == 'ring': m0 = f's_add_u32 m0, s{sRING}, {(pos + i)*1024}'
        else: m0 = f's_add_u32 m0, s{sXB}, {pos + i*1024}'
        return (m0, f's_add_u32 s{sSO}, s{sWJ[j]}, {(i // 4) * 4 * 7168}')
def slot_tag(n):
    return f'S{n}' if n < 184 else f'WO{(n-184)//8}'
def consumed_tags(n):
    o = n - NPOS
    if o < 0 or n >= 184 + 24: return ()
    if o < 56: return (f'rw{o//2}',)
    if o < 120: return (f'rk{(o-56)//8}',)
    if o < 184: return (f'rv{(o-120)//2}',)
    return ()
def issue_slots(ns):
    out = []
    for n in ns:
        su = group_setup(n - n % 4)
        if n % 4 == 0:
            out += [Ins(su[0]), Ins(su[1])]
            if n < 52:
                out += [Ins(f's_add_u32 s{sWGQ}, s{sWGQ}, 262144'), Ins(f's_cmp_eq_u32 s{sWGQ}, {14*262144}'), Ins(f's_cselect_b32 s{sWGQ}, 0, s{sWGQ}')]
        j = n % 4
        if n < 56: v, r, t = vW[j], sWQ, nt('nt_w')
        elif n < 120: v, r, t = vK[j], sK, nt('nt_kv')
        elif n < 184: v, r, t = vV[j], sV, nt('nt_kv')
        else: v, r, t = vO[j], sWO, nt('nt_w')
        off = f' offset:{j*1024}' if j else ''
        out.append(Ins(f'buffer_load_dwordx4 {V(v)}, {srd(r)}, s{sSO} offen{off}{t} lds', tag=slot_tag(n), need_lds=consumed_tags(n), note=su))
    return out
def interleave(mfmas, fl):
    out = []
    for i, m in enumerate(mfmas):
        out.append(m); out.extend(fl.get(i, []))
    return out
def spread(dst, items, first, last):
    n = last - first + 1
    for k, it in enumerate(items):
        dst.setdefault(first + (k * n) // len(items), []).append(it)

e('s_cmp_ge_u32 s2, 256')
e('s_cbranch_scc1 L_end')
e('s_load_dwordx16 s[4:19], s[0:1], 0')
if OPT['stamp']:
    e('s_memrealtime s[98:99]'); e('s_memtime s[100:101]'); NST[0] = 2
e(f'v_lshrrev_b32 {V(vX1)}, 6, v0')
e(f'v_and_b32 {V(vLANE)}, 63, v0')
e(f'v_readfirstlane_b32 s{sW}, {V(vX1)}')
e(f'v_lshlrev_b32 {V(vLIN)}, 4, {V(vLANE)}')
e('s_and_b32 s53, s2, 7')
e('s_lshr_b32 s54, s2, 3')
e('s_lshr_b32 s55, s54, 2')
e('s_and_b32 s56, s54, 1')
e('s_bfe_u32 s57, s54, 0x10001')
e('s_lshl_b32 s58, s53, 1')
e('s_add_u32 s58, s58, s56')
e('s_lshl_b32 s59, s55, 1')
e('s_add_u32 s59, s59, s57')
e(f's_mul_i32 s60, s59, {64*896}')
e('s_lshl_b32 s61, s58, 9')
e('s_lshl_b32 s62, s55, 3')
e('s_add_u32 s62, s62, s53')
e('s_lshl_b32 s62, s62, 18')
e('s_mul_i32 s63, s58, 229376')
e(f's_mul_i32 s{sRING}, s{sW}, {RINGSZ}')
e(f's_add_u32 s{sRING}, s{sRING}, {RING0}')
e(f's_mul_i32 s{sXL}, s{sW}, {16*XPITCH}')
e(f's_mul_i32 s{sXG}, s{sW}, {16*896}')
e(f's_lshl_b32 s{sXB}, s{sW}, 13')
e('s_waitcnt lgkmcnt(0)')
if OPT['stamp']:
    e('s_mov_b32 s64, s98'); e('s_mov_b32 s65, s100')
if OPT['rot_kv'] == 1: e('s_and_b32 s47, s54, 3')
elif OPT['rot_kv'] == 2: e('s_and_b32 s47, s54, 2')
else: e('s_mov_b32 s47, 0')
for c in range(4):
    e(f's_add_u32 s48, s47, {c}'); e('s_and_b32 s48, s48, 3'); e(f's_lshl_b32 s{sKC[c]}, s48, 16')
if OPT['rot_wq']:
    e('s_mul_i32 s47, s59, 7'); e('s_lshr_b32 s47, s47, 3')
else: e('s_mov_b32 s47, 0')
e(f's_lshl_b32 s{sWGQ}, s47, 18')
e('s_lshl_b32 s99, s47, 2')
if OPT['rot_wo']:
    e('s_mul_i32 s47, s59, 7'); e('s_lshr_b32 s47, s47, 4')
else: e('s_mov_b32 s47, 0')
for j in range(7):
    e(f's_add_u32 s48, s47, {j}'); e('s_cmp_ge_u32 s48, 7'); e('s_cselect_b32 s46, 7, 0'); e('s_sub_u32 s48, s48, s46'); e(f's_lshl_b32 s{sWJ[j]}, s48, 7')
def mk_srd(pe, r, plo, off_sreg, nrec):
    pe(f's_add_u32 s{r}, s{plo}, s{off_sreg}')
    pe(f's_addc_u32 s{r+1}, s{plo+1}, 0')
    pe(f's_and_b32 s{r+1}, s{r+1}, 0xffff')
    pe(f's_mov_b32 s{r+2}, {nrec}')
    pe(f's_mov_b32 s{r+3}, 0x20000')
mk_srd(e, sX, 4, 60, 64*896)
mk_srd(e, sWQ, 10, 61, 447*8192+512)
mk_srd(e, sK, 6, 62, 262144)
mk_srd(e, sV, 8, 62, 262144)
mk_srd(e, sWO, 12, 63, 229376)
if OPT['pf']:
    e(f's_cmp_eq_u32 s{sW}, 4')
    e('s_cbranch_scc1 L_pf')
e(f'v_add_u32 {V(vX1)}, s99, {V(vLANE)}')
e(f'v_subrev_u32 {V(vX2)}, 56, {V(vX1)}')
e(f'v_cmp_gt_u32 vcc, 56, {V(vX1)}')
e(f'v_cndmask_b32 {V(vX1)}, {V(vX2)}, {V(vX1)}, vcc')
e(f'v_lshlrev_b32 {V(vX1)}, 4, {V(vX1)}')
e('s_mov_b32 exec_hi, 0x00ffffff')
for r in range(16):
    e(f's_add_u32 m0, s{sXL}, {r*XPITCH}')
    e(f's_add_u32 s{sSO}, s{sXG}, {r*896}')
    e(f'buffer_load_dwordx4 {V(vX1)}, {srd(sX)}, s{sSO} offen{nt("nt_x")} lds', tag='X')
e('s_mov_b32 exec_hi, -1')
t0, t1, t2, t3 = vT[0], vT[1], vT[2], vT[3]
vSWZ = vX5
e(f'v_bfe_u32 {V(t0)}, {V(vLANE)}, 4, 1')
e(f'v_lshlrev_b32 {V(t0)}, 2, {V(t0)}')
e(f'v_and_b32 {V(t1)}, 7, {V(vLANE)}')
e(f'v_xor_b32 {V(t0)}, {V(t0)}, {V(t1)}')
e(f'v_lshlrev_b32 {V(vX4)}, 4, {V(t0)}')
e(f's_lshl_b32 s{sT0}, s{sW}, 7')
e(f'v_add_u32 {V(vSWZ)}, s{sT0}, {V(vX4)}')
e(f'v_lshrrev_b32 {V(vX3)}, 3, {V(vLANE)}')
e(f'v_lshl_add_u32 {V(vW[0])}, {V(vX3)}, 13, {V(vSWZ)}')
for j in range(1, 4):
    e(f'v_add_u32 {V(vW[j])}, {j*(65536-1024)}, {V(vW[0])}')
NI = OPT['init_slots']
P.extend(issue_slots(range(0, NI)))
e('s_mul_i32 s59, s2, 57344')
mk_srd(e, sP, 18, 59, 57344)
e(f's_mov_b32 s{sC}, 0x3db8aa3b')
e(f'v_lshrrev_b32 {V(t1)}, 4, {V(vLANE)}')
e(f'v_and_b32 {V(t2)}, 15, {V(vLANE)}')
e(f'v_xor_b32 {V(t2)}, {V(t2)}, {V(t1)}')
e(f's_lshl_b32 s{sT0}, s{sW}, 14')
e(f'v_lshlrev_b32 {V(t1)}, 9, {V(t1)}')
e(f'v_add_u32 {V(t1)}, s{sT0}, {V(t1)}')
for j in range(4):
    e(f'v_xor_b32 {V(t3)}, {4*j}, {V(t2)}')
    e(f'v_lshl_add_u32 {V(vK[j])}, {V(t3)}, 4, {V(t1)}')
    if j: e(f'v_add_u32 {V(vK[j])}, {j*1024}, {V(vK[j])}')
hf, r4, g1, c4, sw, b64 = vT[4], vT[5], vT[6], vT[7], vT[8], vT[9]
def lane_fields(E):
    E(Ins(f'v_lshrrev_b32 {V(hf)}, 5, {V(vLANE)}'))
    E(Ins(f'v_bfe_u32 {V(r4)}, {V(vLANE)}, 2, 2'))
    E(Ins(f'v_bfe_u32 {V(g1)}, {V(vLANE)}, 4, 1'))
    E(Ins(f'v_and_b32 {V(c4)}, 3, {V(vLANE)}'))
    E(Ins(f'v_lshrrev_b32 {V(t0)}, 1, {V(c4)}'))
    E(Ins(f'v_and_b32 {V(t1)}, 1, {V(c4)}'))
    E(Ins(f'v_lshl_or_b32 {V(sw)}, {V(t1)}, 1, {V(t0)}'))
    E(Ins(f'v_lshrrev_b32 {V(b64)}, 1, {V(r4)}'))
    E(Ins(f'v_lshlrev_b32 {V(b64)}, 6, {V(b64)}'))
lane_fields(P.add)
e(f'v_and_b32 {V(t0)}, 31, {V(vLANE)}')
e(f'v_mul_u32_u24 {V(vXA)}, {XPITCH}, {V(t0)}')
e(f'v_lshl_add_u32 {V(vXA)}, {V(hf)}, 4, {V(vXA)}')
e(f'v_lshlrev_b32 {V(t0)}, 5, {V(g1)}')
e(f'v_lshl_add_u32 {V(t1)}, {V(sw)}, 3, {V(t0)}')
e(f'v_lshl_add_u32 {V(t2)}, {V(c4)}, 3, {V(t0)}')
e(f'v_lshlrev_b32 {V(t3)}, 7, {V(r4)}')
e(f'v_add_u32 {V(t3)}, s{sRING}, {V(t3)}')
for dt in range(2):
    e(f'v_xor_b32 {V(t0)}, {64*dt}, {V(b64)}')
    e(f'v_add3_u32 {V(vWA[dt])}, {V(t0)}, {V(t1)}, {V(t3)}')
    e(f'v_lshl_add_u32 {V(vWA[dt])}, {V(hf)}, 10, {V(vWA[dt])}')
    e(f'v_add3_u32 {V(vVA[dt])}, {V(t0)}, {V(t2)}, {V(t3)}')
    e(f'v_lshl_add_u32 {V(vVA[dt])}, {V(hf)}, 9, {V(vVA[dt])}')
e(f's_lshl_b32 s{sT0}, s{sW}, 12')
e(f'v_add_u32 {V(vXW)}, s{sT0}, {V(vLIN)}')
e(f'v_and_b32 {V(t0)}, 31, {V(vLANE)}')
e(f'v_lshlrev_b32 {V(t0)}, 4, {V(t0)}')
e(f'v_add_u32 {V(vSR)}, {STAT}, {V(t0)}')
e(f's_lshl_b32 s{sT0}, s{sW}, 2')
e(f'v_add_u32 {V(vST)}, s{sT0}, {V(vSR)}')

F1 = vS + 64
def p1_reads(s):
    b = F1 + 16*(s % 3); pos = (2*s) % NPOS
    out = []
    for dt in range(2):
        for rd in range(2):
            out.append(Ins(f'ds_read_b64_tr_b16 {V(b+4*dt+2*rd, 2)}, {V(vWA[dt])} offset:{pos*1024 + rd*512}',
                           tag=(f'rw{s}', f'f1_{s}'), need_vm=(f'S{2*s}', f'S{2*s+1}')))
    for qt in range(2):
        out.append(Ins(f'ds_read_b128 {V(b+8+4*qt, 4)}, {V(vXA)} offset:{qt*32*XPITCH + s*32}', tag=('rx', f'f1_{s}')))
    return out
stamp()
e('s_barrier', need_vm=('X',))
stamp()
P.extend(p1_reads(0)); P.extend(p1_reads(1))
mf = []; fl = {}
nxt = NI
for s in range(28):
    b = F1 + 16*(s % 3)
    for dt in range(2):
        for qt in range(2):
            d = vS + 32*dt + 16*qt
            c = '0' if s == 0 else V(d, 16)
            mf.append(Ins(f'v_mfma_f32_32x32x16_bf16 {V(d,16)}, {V(b+4*dt,4)}, {V(b+8+4*qt,4)}, {c}',
                          need_lds=(f'f1_{s}',) if dt == 0 and qt == 0 else ()))
    if s + 2 < 28:
        spread(fl, p1_reads(s+2), 4*s, 4*s+2)
    lim = min(2*s + 24, nxt + 4, 80) if s >= 0 else nxt
    lim = min(lim, 2*s + 24)
    if lim > nxt:
        spread(fl, issue_slots(range(nxt, lim)), 4*s+1, 4*s+3)
        nxt = lim
def vV_ops():
    o = [Ins(f'v_lshl_add_u32 {V(vV[0])}, {V(vX3)}, 9, {V(vSWZ)}')]
    o += [Ins(f'v_add_u32 {V(vV[j])}, {j*(4096-1024)}, {V(vV[0])}') for j in range(1, 4)]
    return o
spread(fl, vV_ops(), 4*24, 4*27)
P.extend(interleave(mf, fl))
P1_NXT = nxt
stamp()
e('s_barrier', need_lds=('rx',))
P.extend(issue_slots(range(nxt, 80))); nxt = 80
e(f'v_and_b32 {V(vX1)}, 15, {V(vLANE)}')
e(f'v_lshrrev_b32 {V(vX2)}, 5, {V(vLANE)}')
e(f'v_xor_b32 {V(vX1)}, {V(vX1)}, {V(vX2)}')
e(f'v_and_b32 {V(vX2)}, 31, {V(vLANE)}')
e(f'v_lshlrev_b32 {V(vX2)}, 8, {V(vX2)}')
e(f'v_add_u32 {V(vX2)}, s{sRING}, {V(vX2)}')
for s in range(8):
    e(f'v_xor_b32 {V(vKA[s])}, {2*s}, {V(vX1)}')
    e(f'v_lshl_add_u32 {V(vKA[s])}, {V(vKA[s])}, 4, {V(vX2)}')
PK = vT[0]
for dt in range(2):
    for qt in range(2):
        d = vS + 32*dt + 16*qt
        base = PK + 8*((dt*2+qt) % 2)
        for j in range(8):
            e(f'v_cvt_pk_bf16_f32 {V(base+j)}, {V(d+2*j)}, {V(d+2*j+1)}')
        for t in range(2):
            e(f'ds_write_b128 {V(vXW)}, {V(base+4*t,4)} offset:{qt*16384 + (2*dt+t)*1024}', tag='wq')
e('s_barrier', need_lds=('wq',))
def q_read(qt, s):
    return Ins(f'ds_read_b128 {V(vQ+32*qt+4*(s%8),4)}, {V(vLIN)} offset:{(qt*16+s)*1024}', tag=('rq', f'q{s}'))

def k_read(ks):
    h, sp = ks // 8, ks % 8
    pos = (56 + 8*h) % NPOS
    return Ins(f'ds_read_b128 {V(FK+4*(ks%4),4)}, {V(vKA[sp])} offset:{pos*1024}', tag=(f'rk{h}', f'k{ks}'),
               need_vm=tuple(f'S{56+8*h+j}' for j in range(8)))
vM = [vT[16], vT[17]]
def max_ops(c):
    out = []
    for qt in range(2):
        d = vS + 32*c + 16*qt
        for j in range(8):
            if c == 0 and j == 0: out.append(Ins(f'v_max_f32 {V(vM[qt])}, {V(d)}, {V(d+1)}'))
            else: out.append(Ins(f'v_max3_f32 {V(vM[qt])}, {V(d+2*j)}, {V(d+2*j+1)}, {V(vM[qt])}'))
    return out
stamp()
for s in range(8):
    P.add(q_read(0, s)); P.add(q_read(1, s))
    if s < 3: P.add(k_read(s))
mf = []; fl = {}
for ks in range(64):
    h, sp = ks // 8, ks % 8
    c, dh = khalf(h)
    s = 8*dh + sp
    for qt in range(2):
        d = vS + 32*c + 16*qt
        cc = '0' if s == 0 else V(d, 16)
        mf.append(Ins(f'v_mfma_f32_32x32x16_bf16 {V(d,16)}, {V(FK+4*(ks%4),4)}, {V(vQ+32*qt+4*sp,4)}, {cc}',
                      need_lds=(f'k{ks}', f'q{s}') if qt == 0 else ()))
    if ks + 3 < 64: fl.setdefault(2*ks, []).append(k_read(ks+3))
    if 24 <= ks < 32:
        fl.setdefault(2*ks+1, []).extend([q_read(0, ks-24+8), q_read(1, ks-24+8)])
for h in range(1, 8):
    spread(fl, issue_slots(range(80+8*(h-1), 80+8*h)), 16*h+1, 16*h+15)
for c in range(3):
    spread(fl, max_ops(c), 16*(5+c)+6, 16*(5+c)+15)
def vO_ops():
    o = [Ins(f's_lshl_b32 s{sT0}, s{sW}, 6'),
         Ins(f'v_add_u32 {V(vX1)}, s{sT0}, {V(vX3)}'),
         Ins(f'v_mul_u32_u24 {V(vX1)}, 896, {V(vX1)}'),
         Ins(f'v_add_u32 {V(vO[0])}, {V(vX1)}, {V(vX4)}')]
    o += [Ins(f'v_add_u32 {V(vO[j])}, {j*(7168-1024)}, {V(vO[0])}') for j in range(1, 4)]
    return o
spread(fl, vO_ops(), 16*6+2, 16*6+5)
P.extend(interleave(mf, fl))
stamp()
P.extend(issue_slots(range(136, 144)))
P.extend(max_ops(3))
tA = vX1
for qt in range(2):
    e(f'v_mov_b32 {V(tA)}, {V(vM[qt])}')
    e(f'v_permlane32_swap_b32 {V(tA)}, {V(vM[qt])}')
    e(f'v_max_f32 {V(vM[qt])}, {V(tA)}, {V(vM[qt])}')
    e(f'ds_write_b32 {V(vST)}, {V(vM[qt])} offset:{qt*512}', tag='wm')
e('s_barrier', need_lds=('wm',))
for qt in range(2):
    e(f'ds_read_b128 {V(vT[4*qt],4)}, {V(vSR)} offset:{qt*512}')
vMC = vM
for qt in range(2):
    b = vT[4*qt]
    e(f'v_max3_f32 {V(tA)}, {V(b)}, {V(b+1)}, {V(b+2)}')
    e(f'v_max_f32 {V(tA)}, {V(tA)}, {V(b+3)}')
    e(f'v_mul_f32 {V(vMC[qt])}, s{sC}, {V(tA)}')
vL = [vT[18], vT[19]]
def exp_ops(c):
    out = []
    for qt in range(2):
        d = vS + 32*c + 16*qt; base = PK + 8*qt
        fma = lambda j: Ins(f'v_fma_f32 {V(d+j)}, {V(d+j)}, s{sC}, -{V(vMC[qt])}')
        ex = lambda j: Ins(f'v_exp_f32 {V(d+j)}, {V(d+j)}')
        def tail(j):
            o = []
            if c == 0 and j == 0: o.append(Ins(f'v_mov_b32 {V(vL[qt])}, {V(d)}'))
            else: o.append(Ins(f'v_add_f32 {V(vL[qt])}, {V(vL[qt])}, {V(d+j)}'))
            if j % 2 == 1: o.append(Ins(f'v_cvt_pk_bf16_f32 {V(base+j//2)}, {V(d+j-1)}, {V(d+j)}'))
            if j == 7: o.append(Ins(f'ds_write_b128 {V(vXW)}, {V(base,4)} offset:{PBUF(c) + (qt*2)*1024}', tag=f'wp{c}'))
            if j == 15: o.append(Ins(f'ds_write_b128 {V(vXW)}, {V(base+4,4)} offset:{PBUF(c) + (qt*2+1)*1024}', tag=f'wp{c}'))
            return o
        out.append(fma(0))
        for j in range(16):
            if j + 1 < 16: out.append(fma(j+1))
            out.append(ex(j))
            if j >= 1: out += tail(j-1)
        out += tail(15)
    return out
def sum_ops():
    out = []
    for qt in range(2):
        out.append(Ins(f'v_mov_b32 {V(vX1)}, {V(vL[qt])}'))
        out.append(Ins(f'v_permlane32_swap_b32 {V(vX1)}, {V(vL[qt])}'))
        out.append(Ins(f'v_add_f32 {V(vL[qt])}, {V(vX1)}, {V(vL[qt])}'))
        out.append(Ins(f'ds_write_b32 {V(vST)}, {V(vL[qt])} offset:{1024 + qt*512}', tag='wl'))
    return out
P.extend(exp_ops(0))

def F3(u): return [FK, vS, vS + 16][u % 3]
def v_reads(u):
    b = F3(u); pos = (120 + 2*u) % NPOS
    return [Ins(f'ds_read_b64_tr_b16 {V(b+4*dt+2*rd,2)}, {V(vVA[dt])} offset:{(pos+rd)*1024}', tag=(f'rv{u}', f'f3_{u}'),
                need_vm=(f'S{120+2*u}', f'S{121+2*u}')) for dt in range(2) for rd in range(2)]
def p_reads(u):
    b = F3(u); c, uu = u // 8, u % 8
    wq_, t = uu // 2, uu % 2
    return [Ins(f'ds_read_b128 {V(b+8+4*qt,4)}, {V(vLIN)} offset:{PBUF(c) + wq_*4096 + (qt*2+t)*1024}', tag=(f'rp{c}', f'f3_{u}')) for qt in range(2)]
stamp()
P.extend(v_reads(0)); P.extend(v_reads(1))
e('s_barrier', need_lds=('wp0',))
P.extend(p_reads(0)); P.extend(p_reads(1))
mf = []; fl = {}
vOACC = vQ
for u in range(32):
    b = F3(u)
    for dt in range(2):
        for qt in range(2):
            d = vOACC + 32*dt + 16*qt
            cc = '0' if u == 0 else V(d, 16)
            mf.append(Ins(f'v_mfma_f32_32x32x16_bf16 {V(d,16)}, {V(b+4*dt,4)}, {V(b+8+4*qt,4)}, {cc}',
                          need_lds=(f'f3_{u}',) if dt == 0 and qt == 0 else ()))
BAR3 = 27
for u in range(32):
    if u + 2 < 32:
        spread(fl, v_reads(u+2), 4*u, 4*u+1)
        if u % 8 == 6: pass
        elif u % 8 == 7:
            fl.setdefault(4*u, []).extend(p_reads(u+1))
            fl.setdefault(4*u+2, []).extend(p_reads(u+2))
        else: fl.setdefault(4*u+2, []).extend(p_reads(u+2))
    n0 = 144 + 2*(u-1)
    if u >= 1 and n0 + 1 < 184 + 24:
        spread(fl, issue_slots([n0, n0+1]), 4*u+2, 4*u+3)
for c in range(3):
    s0 = 32*c
    ex = exp_ops(c+1)
    if c == 2: ex = ex + sum_ops()
    tmp = {}
    spread(tmp, ex, s0, s0+BAR3-1)
    for k, v in tmp.items(): fl[k] = v + fl.get(k, [])
    fl.setdefault(s0+BAR3, []).append(Ins('s_barrier', need_lds=(f'wp{c+1}', 'wl', f'rp{c-1}')))
fl.setdefault(3*32+8, []).append(Ins('s_barrier', need_lds=('rp2',)))
vRL = vM
lt = []
for qt in range(2):
    lt.append(Ins(f'ds_read_b128 {V(vT[4*qt],4)}, {V(vSR)} offset:{1024 + qt*512}'))
for qt in range(2):
    b = vT[4*qt]
    lt.append(Ins(f'v_add_f32 {V(b)}, {V(b)}, {V(b+1)}'))
    lt.append(Ins(f'v_add_f32 {V(b+2)}, {V(b+2)}, {V(b+3)}'))
    lt.append(Ins(f'v_add_f32 {V(b)}, {V(b)}, {V(b+2)}'))
    lt.append(Ins(f'v_rcp_f32 {V(vRL[qt])}, {V(b)}'))
spread(fl, lt, 3*32+2, 3*32+10)
ad = []
hf, r4, g1, c4, sw, b64 = vT[8], vT[9], vT[10], vT[11], vT[12], vT[13]
t0, t1, t2, t3 = vT[14], vT[15], vX1, vX2
lane_fields(ad.append)
ad += [Ins(f's_and_b32 s{sT0}, s{sW}, 1'), Ins(f's_lshl_b32 s{sT0}, s{sT0}, 6'),
       Ins(f'v_xor_b32 {V(t0)}, s{sT0}, {V(b64)}'),
       Ins(f'v_lshlrev_b32 {V(t1)}, 5, {V(g1)}'),
       Ins(f'v_lshl_add_u32 {V(t1)}, {V(sw)}, 3, {V(t1)}'),
       Ins(f'v_lshl_add_u32 {V(t2)}, {V(hf)}, 2, {V(r4)}'),
       Ins(f'v_lshlrev_b32 {V(t2)}, 7, {V(t2)}'),
       Ins(f'v_add3_u32 {V(vOA[2])}, {V(t0)}, {V(t1)}, {V(t2)}'),
       Ins(f'v_add_u32 {V(vOA[0])}, {RING0}, {V(vOA[2])}'),
       Ins(f'v_add_u32 {V(vOA[1])}, {RING0 + 2*RINGSZ}, {V(vOA[2])}'),
       Ins(f's_lshr_b32 s{sT0}, s{sW}, 1'), Ins(f's_lshl_b32 s{sT0}, s{sT0}, 14'),
       Ins(f'v_add_u32 {V(vOR)}, s{sT0}, {V(vLIN)}'),
       Ins(f's_lshl_b32 s{sT0}, s{sW}, 11'),
       Ins(f'v_add_u32 {V(vPS)}, s{sT0}, {V(vLIN)}')]
spread(fl, ad, 3*32+12, 3*32+30)
P.extend(interleave(mf, fl))
stamp()
P.extend(issue_slots(range(206, 208)))
for dt in range(2):
    for qt in range(2):
        d = vOACC + 32*dt + 16*qt
        base = PK + 8*((dt*2+qt) % 2)
        for j in range(16):
            e(f'v_mul_f32 {V(d+j)}, {V(vRL[qt])}, {V(d+j)}')
        for j in range(8):
            e(f'v_cvt_pk_bf16_f32 {V(base+j)}, {V(d+2*j)}, {V(d+2*j+1)}')
        for t in range(2):
            e(f'ds_write_b128 {V(vXW)}, {V(base+4*t,4)} offset:{OX + qt*16384 + (2*dt+t)*1024}', tag='wo')
e('s_barrier', need_lds=('wo',), need_vm=('WO0',))
FO = vS
F4 = vS + 64; NB4 = 8
def wo_read(i):
    j, ks = i // 16, i % 16
    kind, pos = WOBUF[j]
    b = F4 + 4*(i % NB4); wsrc = ks // 4
    out = []
    for rd in range(2):
        sl = 2*(ks % 4) + rd
        if kind == 'ring': a, off = vOA[wsrc // 2], (wsrc % 2)*RINGSZ + (pos + sl)*1024
        else: a, off = vOA[2], pos + wsrc*8192 + sl*1024
        out.append(Ins(f'ds_read_b64_tr_b16 {V(b+2*rd,2)}, {V(a)} offset:{off}', tag=(f'ro{j}', f'f4_{i}')))
    return out
LEAD = OPT['lead4']
stamp()
for ks in range(16):
    e(f'ds_read_b128 {V(FO+4*ks,4)}, {V(vOR)} offset:{OX + ks*1024}', tag=('rof', f'of{ks}'))
    if ks < LEAD: P.extend(wo_read(ks))
ACC = [vQ, vQ + 16]
def epi(j):
    d = ACC[j % 2]; base = PK + 8*(j % 2)
    o = [Ins(f'v_cvt_pk_bf16_f32 {V(base+k)}, {V(d+2*k)}, {V(d+2*k+1)}') for k in range(8)]
    mods = (' sc1' if OPT['st_sc1'] else '') + (' nt' if OPT['st_nt'] else '')
    for u in range(2):
        if u == 0: o.append(Ins(f's_lshl_b32 s{sT1}, s{sWJ[j]}, 6'))
        o.append(Ins(f'buffer_store_dwordx4 {V(base+4*u,4)}, {V(vPS)}, {srd(sP)}, s{sT1} offen offset:{u*1024}{mods}', tag=f'ST{j}'))
    return o
mf = []; fl = {}
for i in range(112):
    j, ks = i // 16, i % 16
    d = ACC[j % 2]
    cc = '0' if ks == 0 else V(d, 16)
    mf.append(Ins(f'v_mfma_f32_32x32x16_bf16 {V(d,16)}, {V(F4+4*(i%NB4),4)}, {V(FO+4*ks,4)}, {cc}',
                  need_lds=(f'f4_{i}', f'of{ks}') if j == 0 else (f'f4_{i}',)))
    k = i + LEAD
    if k < 112:
        if k % 16 == 0:
            jj = k // 16
            nl = ('rof',) if jj == 1 else ()
            fl.setdefault(i, []).append(Ins('s_barrier', need_vm=(f'WO{jj}',), need_lds=nl))
        fl.setdefault(i, []).extend(wo_read(k))
    if ks == 2 and j >= 1:
        spread(fl, epi(j-1), i+1, i+8)
def stage_issue(j, at):
    spread(fl, issue_slots(range(184+8*j, 192+8*j)), at, at+9)
stage_issue(3, 16 - LEAD + 1); stage_issue(4, 16 - LEAD + 11)
stage_issue(5, 32 - LEAD + 7); stage_issue(6, 48 - LEAD + 7)
P.extend(interleave(mf, fl))
stamp()
P.extend(epi(6))
stamp()
if OPT['stamp']:
    e('s_waitcnt vmcnt(0)')
    stamp(); stamp(real=True)
    e('s_lshl_b32 s59, s2, 2')
    e(f's_add_u32 s59, s59, s{sW}')
    e('s_lshl_b32 s59, s59, 8')
    e('s_add_u32 s59, s59, 0x2000000')
    e('s_add_u32 s60, s18, s59')
    e('s_addc_u32 s61, s19, 0')
    e('v_mov_b32 v2, 0')
    for k in range(NST[0]):
        e(f'v_mov_b32 v4, s{64+k}'); e(f'v_mov_b32 v5, 0')
        e(f'global_store_dwordx2 v2, v[4:5], s[60:61] offset:{8*k}')
    n = NST[0]
    if OPT['stamp'] == 2:
        for k in range(1, n-2):
            e(f's_sub_u32 s59, s{64+k+1}, s{64+k}'); e('v_mov_b32 v4, s59')
            e(f'global_store_dword v2, v4, s[60:61] offset:{128+4*(k-1)}')
        e(f's_sub_u32 s59, s{64+n-1}, s64'); e('v_mov_b32 v4, s59')
        e(f'global_store_dword v2, v4, s[60:61] offset:{128+4*(n-3)}')
        e('v_mov_b32 v4, s64')
        e(f'global_store_dword v2, v4, s[60:61] offset:{128+4*12}')
    e('s_waitcnt vmcnt(0)')
e('s_endpgm')

def check_m0(prog):
    m0 = so = None
    for i in prog.ins:
        if i.kind == 'salu' and 'm0' in i.wr: m0 = i.text
        if i.kind == 'salu' and f's{sSO}' in i.wr: so = i.text
        if i.kind == 'dma' and i.note is not None:
            assert (m0, so) == i.note, (i.text, m0, so, i.note)
check_m0(P)
issued = [i for i in P.ins if i.kind == 'dma']
assert len(issued) == 16 + 240, len(issued)
if OPT['dmaonly']:
    keep = []
    for i in P.ins:
        drop = i.kind in ('mfma', 'dsr', 'dsw', 'trans', 'perm') or i.mn in ('v_max_f32', 'v_max3_f32', 'v_fma_f32', 'v_add_f32', 'v_cvt_pk_bf16_f32', 'v_mul_f32')
        if drop:
            if i.need_vm: keep.append(Ins('s_nop 0', need_vm=i.need_vm))
        else: keep.append(i)
    P.ins = keep
if OPT['nodma']:
    P.ins = [i for i in P.ins if i.kind != 'dma']
P.insert_waits()
nn = P.pad_hazards()
nbar = sum(1 for i in P.ins if i.kind == 'barrier')

F = Prog(); f = F.e
if OPT['pf']:
    F.e('L_pf:')
    pm = ' nt' if OPT['pf_nt'] else ''
    f('s_and_b32 s60, s54, 3')
    f('s_lshl_b32 s61, s55, 1'); f('s_add_u32 s61, s61, s57')
    f('s_mul_i32 s62, s61, 28')
    f('v_lshrrev_b32 v2, 2, v0'); f('v_add_u32 v3, s62, v2'); f('v_lshlrev_b32 v3, 13, v3')
    f('v_and_b32 v4, 3, v0'); f('v_lshlrev_b32 v4, 7, v4'); f('v_add_u32 v3, v3, v4')
    f('s_lshl_b32 s62, s60, 5')
    f('v_lshrrev_b32 v5, 1, v0'); f('v_add_u32 v5, s62, v5'); f('v_lshlrev_b32 v5, 9, v5')
    f('v_and_b32 v6, 1, v0'); f('v_lshl_add_u32 v5, v6, 7, v5')
    f('v_add_u32 v6, s62, v2'); f('v_lshlrev_b32 v6, 9, v6'); f('v_add_u32 v6, v6, v4')
    f('s_lshl_b32 s62, s61, 4')
    f('v_and_b32 v7, 15, v0'); f('v_add_u32 v7, s62, v7'); f('v_mul_u32_u24 v7, 896, v7')
    f('v_lshrrev_b32 v8, 4, v0'); f('v_lshl_add_u32 v7, v8, 7, v7')
    cnt = [0]
    def pf(v, r, so):
        f(f's_mov_b32 s63, {so}')
        f(f'buffer_load_dword v{16 + cnt[0] % 8}, v{v}, {srd(r)}, s63 offen{pm}'); cnt[0] += 1
    WQ = [(3, sWQ, 0), (3, sWQ, 16*8192)]
    KK = [(5, sK, c*65536 + dh*256) for dh in range(2) for c in range(4)]
    VV = [(6, sV, c*65536 + t*8192) for c in range(4) for t in range(2)]
    WO = [(7, sWO, 0), (7, sWO, 512)]
    scheds = {
        0: {0: WQ + KK[:4], 1: KK[4:] + VV[:4], 3: VV[4:] + WO},
        1: {0: WQ + KK, 1: VV[:4], 3: VV[4:] + WO},
        2: {0: WQ + KK + VV + WO},
        3: {0: WQ, 1: KK, 3: VV + WO},
        4: {0: WQ + KK[:4], 1: KK[4:] + VV + WO},
        5: {},
        6: {0: WQ},
        7: {0: WO},
    }
    sc = scheds[OPT['pfsched']]
    for b in range(nbar + 1):
        for a in sc.get(b, []): pf(*a)
        if b < nbar: f('s_barrier')
    f('s_endpgm')
P.e('L_end:'); e('s_endpgm')
main_text = P.text()
main_text = main_text.replace('L_end:\n', F.text() + 'L_end:\n') if OPT['pf'] else main_text

R = Prog(); r = R.e
rm = (' sc1' if OPT['red_sc1'] else '') + (' nt' if OPT['red_nt'] else '')
r('s_cmp_ge_u32 s2, 224')
r('s_cbranch_scc1 L_rend')
if OPT['stamp']: r('s_memrealtime s[30:31]')
r('s_load_dwordx2 s[4:5], s[0:1], 40')
r('s_load_dwordx2 s[6:7], s[0:1], 56')
r('v_lshrrev_b32 v2, 6, v0')
r('v_and_b32 v1, 63, v0')
r('v_readfirstlane_b32 s8, v2')
r('s_lshl_b32 s9, s2, 2')
r('s_add_u32 s9, s9, s8')
r('s_mul_i32 s10, s9, 1171')
r('s_lshr_b32 s10, s10, 16')
r('s_mul_i32 s11, s10, 56')
r('s_sub_u32 s11, s9, s11')
r('s_mul_i32 s14, s10, %d' % (16*57344))
r('s_lshl_b32 s15, s11, 10')
r('s_add_u32 s14, s14, s15')
r('s_waitcnt lgkmcnt(0)')
r('s_add_u32 s20, s6, s14')
r('s_addc_u32 s21, s7, 0')
r('s_and_b32 s21, s21, 0xffff')
r('s_mov_b32 s22, %d' % (15*57344 + 1024))
r('s_mov_b32 s23, 0x20000')
r('s_mov_b32 s24, s4')
r('s_and_b32 s25, s5, 0xffff')
r('s_mov_b32 s26, %d' % (1024*896))
r('s_mov_b32 s27, 0x20000')
r('v_lshlrev_b32 v3, 4, v1')
for h in range(16):
    r(f's_mov_b32 s28, {h*57344}')
    r(f'buffer_load_dwordx4 v[{8+4*h}:{11+4*h}], v3, s[20:23], s28 offen{rm}')
r('s_lshr_b32 s12, s11, 3')
r('s_bfe_u32 s13, s11, 0x10002')
r('s_bfe_u32 s16, s11, 0x10001')
r('s_and_b32 s17, s11, 1')
r('s_lshl_b32 s15, s10, 6')
r('s_lshl_b32 s13, s13, 5')
r('s_add_u32 s15, s15, s13')
r('v_and_b32 v4, 31, v1')
r('v_add_u32 v4, s15, v4')
r('v_mul_u32_u24 v4, 896, v4')
r('s_lshl_b32 s12, s12, 7')
r('s_lshl_b32 s16, s16, 6')
r('s_lshl_b32 s17, s17, 5')
r('s_add_u32 s12, s12, s16')
r('s_add_u32 s12, s12, s17')
r('v_lshrrev_b32 v5, 5, v1')
r('v_lshlrev_b32 v5, 4, v5')
r('v_add3_u32 v4, v4, v5, s12')
for h in range(16):
    for k in range(4):
        src = 8 + 4*h + k
        if h == 0:
            r(f'v_lshlrev_b32 v{80+2*k}, 16, v{src}')
            r(f'v_and_b32 v{81+2*k}, 0xffff0000, v{src}')
        else:
            r(f'v_lshlrev_b32 v6, 16, v{src}')
            r(f'v_and_b32 v7, 0xffff0000, v{src}')
            r(f'v_add_f32 v{80+2*k}, v{80+2*k}, v6')
            r(f'v_add_f32 v{81+2*k}, v{81+2*k}, v7')
for k in range(4):
    r(f'v_cvt_pk_bf16_f32 v{88+k}, v{80+2*k}, v{81+2*k}')
r('buffer_store_dwordx4 v[88:91], v4, s[24:27], 0 offen')
if OPT['stamp'] == 1:
    r('s_waitcnt vmcnt(0)')
    r('s_memrealtime s[32:33]')
    r('s_lshl_b32 s9, s9, 4')
    r('s_add_u32 s9, s9, 0x2100000')
    r('s_add_u32 s6, s6, s9')
    r('s_addc_u32 s7, s7, 0')
    r('s_waitcnt lgkmcnt(0)')
    r('v_mov_b32 v2, 0')
    r('v_mov_b32 v8, s30'); r('v_mov_b32 v9, s31'); r('v_mov_b32 v10, s32'); r('v_mov_b32 v11, s33')
    r('global_store_dwordx4 v2, v[8:11], s[6:7]')
if OPT['stamp'] == 2:
    r('s_waitcnt vmcnt(0)')
    r('s_or_b32 s9, s2, s8')
    r('s_cmp_eq_u32 s9, 0')
    r('s_cbranch_scc0 L_rend')
    r('s_load_dwordx2 s[10:11], s[0:1], 48')
    r('s_waitcnt lgkmcnt(0)')
    r('s_add_u32 s6, s6, 0x2000080')
    r('s_addc_u32 s7, s7, 0')
    r('v_lshlrev_b32 v2, 2, v1')
    r('v_cmp_gt_u32 vcc, 16, v1')
    r('s_and_saveexec_b64 s[12:13], vcc')
    r('global_load_dword v3, v2, s[6:7]')
    r('s_memrealtime s[32:33]')
    r('s_waitcnt vmcnt(0) lgkmcnt(0)')
    r('v_readlane_b32 s34, v3, 12')
    r('s_nop 4')
    r('s_sub_u32 s30, s30, s34')
    r('s_sub_u32 s32, s32, s34')
    r('v_writelane_b32 v3, s30, 12')
    r('v_writelane_b32 v3, s32, 13')
    r('global_store_dword v2, v3, s[10:11]')
R.e('L_rend:')
r('s_endpgm')
R.insert_waits(); R.pad_hazards()

KD = lambda name, vg, ao, sg: f""".amdhsa_kernel {name}
  .amdhsa_next_free_vgpr {vg}
  .amdhsa_next_free_sgpr {sg}
  .amdhsa_accum_offset {ao}
  .amdhsa_group_segment_fixed_size 0
  .amdhsa_kernarg_size 64
  .amdhsa_user_sgpr_count 2
  .amdhsa_user_sgpr_kernarg_segment_ptr 1
  .amdhsa_system_sgpr_workgroup_id_x 1
  .amdhsa_float_denorm_mode_32 3
.end_amdhsa_kernel
"""
hdr = open('cdna_kernels/' + NAME + '.s.ref').read().split('; Override launch geometry')[0]
blk = 320 if OPT['pf'] else 256
txt = hdr
txt += f"; @launch kernel={NAME}_kernel grid=(256,1,1) block=({blk},1,1) lds=163840\n"
txt += f"; @launch kernel=gqa_reduce_kernel grid=(224,1,1) block=(256,1,1) lds=0\n"
txt += '.amdgcn_target "amdgcn-amd-amdhsa--gfx950"\n.text\n'
txt += f".globl {NAME}_kernel\n.p2align 8\n.type {NAME}_kernel,@function\n{NAME}_kernel:\n" + main_text
txt += f".globl gqa_reduce_kernel\n.p2align 8\n.type gqa_reduce_kernel,@function\ngqa_reduce_kernel:\n" + R.text()
txt += '.section .rodata,"a"\n.p2align 6\n' + KD(NAME + '_kernel', 256, 256, 102) + '.p2align 6\n' + KD('gqa_reduce_kernel', 96, 96, 40)
open(sys.argv[1], 'w').write(txt)
from collections import Counter
print('nstamps', NST[0], 'barriers', nbar, dict(Counter(i.kind for i in P.ins)), 'hazard nop states', nn)
```
